```python
import torch

def _softmax(x, axis=-1):
    return torch.softmax(x, dim=axis)
def _gelu(x):
    return torch.nn.functional.gelu(x, approximate="tanh")
def _silu(x):
    return torch.nn.functional.silu(x)
def _sigmoid(x):
    return torch.sigmoid(x)
def _layernorm(x, axis=-1, eps=1e-5):
    m = x.mean(dim=axis, keepdim=True)
    v = x.var(dim=axis, keepdim=True, unbiased=False)
    return (x - m) / torch.sqrt(v + eps)
def _scatter_add(tgt, idx, src, axis=0):
    return tgt.clone().index_add_(axis, idx, src)
def _segment_sum(src, seg, n):
    out = torch.zeros((n,) + src.shape[1:], dtype=src.dtype)
    return out.index_add_(0, seg, src)
def _pad(x, pw):
    flat = tuple(v for pair in reversed(pw) for v in pair)
    return torch.nn.functional.pad(x, flat)

kernel_name = 'sequential_preLN__gqa_block_cached__geglu_ffn__decode'

def setup_inputs():

    _w = (lambda a: (lambda t: t.to(torch.bfloat16) if t.is_floating_point() else t)(torch.as_tensor(a)))
    def _A_setup():
        B, Sq, D = 4, 1, 512
        Hq, Hkv, Sk, Dh = 32, 32, 8192, 128
        assert Hq % Hkv == 0, (Hq, Hkv)
        return {
            "x": _w((lambda *s: torch.randn(*s, dtype=torch.bfloat16) * 0.05)(B, Sq, D)),
            "k_cache": _w((lambda *s: torch.randn(*s, dtype=torch.bfloat16) * 3.2)(B, Hkv, Sk, Dh)),
            "v_cache": _w((lambda *s: torch.randn(*s, dtype=torch.bfloat16) * 0.4)(B, Hkv, Sk, Dh)),
            "wq": _w((lambda *s: torch.randn(*s, dtype=torch.bfloat16) * 3.2)(D, Hq * Dh) * (D ** -0.5)),
            "wo": _w((lambda *s: torch.randn(*s, dtype=torch.bfloat16) * 0.4)(Hq * Dh, D) * ((Hq * Dh) ** -0.5)),
        }
    _A_in = _A_setup()

    def _B_setup():
        B, S, D, F = 4, 1, 512, 1376
        return {
            "x": _w((lambda *s: torch.randn(*s, dtype=torch.bfloat16) * 0.05)(B, S, D)),
            "w_gate": _w((lambda *s: torch.randn(*s, dtype=torch.bfloat16) * 0.05)(D, F)),
            "w_up": _w((lambda *s: torch.randn(*s, dtype=torch.bfloat16) * 0.05)(D, F)),
            "w_down": _w((lambda *s: torch.randn(*s, dtype=torch.bfloat16) * 0.05)(F, D)),
        }
    _B_in = _B_setup()

    return {
        "A_x": _A_in["x"],
        "A_k_cache": _A_in["k_cache"],
        "A_v_cache": _A_in["v_cache"],
        "A_wq": _A_in["wq"],
        "A_wo": _A_in["wo"],
        "B_x": _B_in["x"],
        "B_w_gate": _B_in["w_gate"],
        "B_w_up": _B_in["w_up"],
        "B_w_down": _B_in["w_down"],
    }

def reference(A_x, A_k_cache, A_v_cache, A_wq, A_wo, B_x, B_w_gate, B_w_up, B_w_down):
    def _A_ref(x, k_cache, v_cache, wq, wo):
        B, Sq, D = x.shape
        Hq, Dh = 32, 128
        Hkv = k_cache.shape[1]
        rep = Hq // Hkv
        q = (lambda x, *d: x.permute(*d))((x @ wq).reshape(B, Sq, Hq, Dh), 0, 2, 1, 3)
        k = (lambda x, n, axis: torch.repeat_interleave(x, n, dim=axis))(k_cache, rep, axis=1)
        v = (lambda x, n, axis: torch.repeat_interleave(x, n, dim=axis))(v_cache, rep, axis=1)
        scores = torch.einsum("bhqd,bhkd->bhqk", q, k) * (Dh ** -0.5)
        p = _softmax(scores, axis=-1)
        o = torch.einsum("bhqk,bhkd->bhqd", p, v)
        return (lambda x, *d: x.permute(*d))(o, 0, 2, 1, 3).reshape(B, Sq, Hq * Dh) @ wo

    def _B_ref(x, w_gate, w_up, w_down):
        return (_gelu(x @ w_gate) * (x @ w_up)) @ w_down

    x = A_x
    h = x + _A_ref(_layernorm(x, axis=-1), A_k_cache, A_v_cache, A_wq, A_wo)
    h2 = h + _B_ref(_layernorm(h, axis=-1), B_w_gate, B_w_up, B_w_down)
    return h2
```

```python
import sys
KNAME = "sequential_preLN__gqa_block_cached__geglu_ffn__decode_kernel"

class Cfg:
    D = 5; LA = 28; F = 28; pre = 16; D0 = 5; bar0 = 24; rot = True; wqflags = 'nt'; codepf = True; D2 = 32
    boost = 24; burst_from = 14; touch = True; q = 'coop'; ptouch = True
    ldflags = "nt"; wflags = "nt"
    stamps = None
    SC = "sc0 sc1"
    spin_max = 1 << 18
    tailprio = 3
    diag = ''

WS_Y2   = 0
WS_OP   = 0x40000
WS_P2   = 0x80000
WS_HM   = 0xD8000
WS_CL   = 0xF8000
WS_GEN  = 0xFC000
WS_QP   = 0x100000
WS_DBG  = 0x220000
WS_IT   = 0x240000
WS_SIZE = 0x280000
K1 = 0x9E3779B9; K2 = 0x7F4A7C15
NFFN = 43
L_XN   = 5248
XN_ROW = 144
L_QV   = 1024
L_PART = 2048
L_ML   = 4096
L_FLAG = L_ML + 32
L_PROG = L_ML + 36
L_MODE = L_ML + 40
L_ROLE = L_ML + 44
L_OA   = 4160
OA_ROW = 272
L_HN   = 5248
HN_ROW = 1040
L_P    = L_HN + 4*HN_ROW
L_ACT  = L_P + 4096
ACT_ROW = 80
L_WQ   = 16384
L_WO   = 32768
L_G    = 49152
L_U    = L_G + 32768
L_DN   = L_U + 32768
L_END  = L_DN + 32768
assert L_OA + 4*OA_ROW <= L_HN and L_ACT + 16*ACT_ROW <= L_WQ and L_HN % 16 == 0 and L_P % 16 == 0 and L_ACT % 16 == 0

SCALE = "0x3db504f3"; LOG2E = "0x3fb8aa3b"; EPS = "0x3727c5ac"; INV512 = "0x3b000000"
DPPM = "row_mask:0xf bank_mask:0xf"

PROFILES = {
  'main': {'start':0, 's_q':1, 's_end':2, 's_bar2':3,
           't_bar1':1, 't_op':2, 't_o':3, 't_bar2':4, 't_y':5, 't_poll1':6, 't_mid':7, 't_end':8},
  'it0':  {'start':0, 's_iss':1, 's_bar1':2, 's_q':3, 'j0':4, 'j5':5, 'j11':6, 'j16':7, 'j31':8,
           't_args':1, 't_x':2, 't_ln':3, 't_bar0':4, 't_pub':5, 't_got':6, 't_bar1':7, 't_pf':8},
  'clr':  {'start':0, 's_c0':1, 's_c1':2, 's_c2':3, 's_q':4},
  'pro':  {'start':0, 's_iss':1, 's_bar1':2, 's_q':3, 's_it0':4,
           't_args':1, 't_x':2, 't_ln':3, 't_bar0':4, 't_pub':5, 't_got':6, 't_bar1':7, 't_pf':8},
}

class G:
    def __init__(s, cfg): s.L = []; s.cfg = cfg
    def A(s, t): s.L.append("  " + t)
    def lab(s, n): s.L.append(n + ":")
    def stamp(s, name):
        p = s.cfg.stamps
        if p and name in PROFILES[p]:
            i = PROFILES[p][name]
            s.A(f"s_memrealtime s[{84+2*i}:{85+2*i}]")

def srd(g, d, base, size, off_sgpr=None):
    if off_sgpr is None:
        g.A(f"s_mov_b32 s{d}, s{base}"); g.A(f"s_mov_b32 s{d+1}, s{base+1}")
    else:
        g.A(f"s_add_u32 s{d}, s{base}, s{off_sgpr}"); g.A(f"s_addc_u32 s{d+1}, s{base+1}, 0")
    g.A(f"s_mov_b32 s{d+2}, {size}"); g.A(f"s_mov_b32 s{d+3}, 0x20000")

def wave_reduce(g, v, op):
    for ctl in ["row_ror:8", "row_ror:4", "row_ror:2", "row_ror:1"]:
        g.A("s_nop 1"); g.A(f"{op}_dpp v{v}, v{v}, v{v} {ctl} {DPPM}")
    g.A("s_nop 1"); g.A(f"{op}_dpp v{v}, v{v}, v{v} row_bcast:15 row_mask:0xa bank_mask:0xf")
    g.A("s_nop 1"); g.A(f"{op}_dpp v{v}, v{v}, v{v} row_bcast:31 row_mask:0xc bank_mask:0xf")

def layernorm8(g, x, t, s_tmp):
    A = g.A
    t0, t1, t2, t3 = t, t+1, t+2, t+3
    A(f"v_add_f32 v{t0}, v{x}, v{x+1}"); A(f"v_add_f32 v{t1}, v{x+2}, v{x+3}")
    A(f"v_add_f32 v{t2}, v{x+4}, v{x+5}"); A(f"v_add_f32 v{t3}, v{x+6}, v{x+7}")
    A(f"v_add_f32 v{t0}, v{t0}, v{t1}"); A(f"v_add_f32 v{t2}, v{t2}, v{t3}"); A(f"v_add_f32 v{t0}, v{t0}, v{t2}")
    wave_reduce(g, t0, "v_add_f32")
    A(f"v_mov_b32 v{t1}, {INV512}")
    A(f"v_readlane_b32 s{s_tmp}, v{t0}, 63")
    A("s_nop 1")
    A(f"v_mul_f32 v{t1}, s{s_tmp}, v{t1}")
    A(f"v_sub_f32 v{t2}, v{x}, v{t1}")
    A(f"v_mul_f32 v{t0}, v{t2}, v{t2}")
    for e in range(1, 8):
        A(f"v_sub_f32 v{t2}, v{x+e}, v{t1}"); A(f"v_fmac_f32 v{t0}, v{t2}, v{t2}")
    A(f"v_cvt_pk_bf16_f32 v{t1}, 0, v{t1}")
    steps = [("row_ror:8", DPPM), ("row_ror:4", DPPM), ("row_ror:2", DPPM), ("row_ror:1", DPPM),
             ("row_bcast:15", "row_mask:0xa bank_mask:0xf"), ("row_bcast:31", "row_mask:0xc bank_mask:0xf")]
    fill = [f"v_sub_f32 v{x+e}, v{x+e}, v{t1}" for e in range(8)] + [f"v_cvt_pk_bf16_f32 v{x+e}, 0, v{x+e}" for e in range(8)]
    fi = 0
    for ctl, m in steps:
        A(fill[fi]); A(fill[fi+1]); fi += 2
        A(f"v_add_f32_dpp v{t0}, v{t0}, v{t0} {ctl} {m}")
    A(fill[fi]); fi += 1
    A(f"v_mov_b32 v{t2}, {INV512}")
    A(f"v_readlane_b32 s{s_tmp}, v{t0}, 63")
    while fi < 16:
        A(fill[fi]); fi += 1
    A(f"v_mul_f32 v{t2}, s{s_tmp}, v{t2}")
    A(f"v_cvt_pk_bf16_f32 v{t2}, 0, v{t2}")
    A(f"v_add_f32 v{t2}, {EPS}, v{t2}")
    A(f"v_cvt_pk_bf16_f32 v{t2}, 0, v{t2}")
    A(f"v_sqrt_f32 v{t2}, v{t2}")
    A("s_nop 0")
    A(f"v_cvt_pk_bf16_f32 v{t2}, 0, v{t2}")
    A(f"v_rcp_f32 v{t3}, v{t2}")
    A("s_nop 0")
    for e in range(8):
        A(f"v_mul_f32 v{t0}, v{x+e}, v{t3}")
        A(f"v_fma_f32 v{x+e}, -v{t0}, v{t2}, v{x+e}")
        A(f"v_fma_f32 v{x+e}, v{x+e}, v{t3}, v{t0}")
        A(f"v_cvt_pk_bf16_f32 v{x+e}, 0, v{x+e}")

def unpack8(g, src, dst):
    for r in range(4):
        g.A(f"v_lshlrev_b32 v{dst+2*r}, 16, v{src+r}")
        g.A(f"v_and_b32 v{dst+2*r+1}, 0xffff0000, v{src+r}")

def onehot_masks(g, m, t):
    A = g.A
    A(f"v_and_b32 v{t}, 15, v0"); A(f"v_and_b32 v{t+1}, 1, v0"); A(f"v_lshlrev_b32 v{t+1}, 4, v{t+1}")
    A(f"v_mov_b32 v{t+2}, 0xffff"); A(f"v_lshlrev_b32 v{t+1}, v{t+1}, v{t+2}"); A(f"v_lshrrev_b32 v{t}, 1, v{t}")
    for r in range(4):
        A(f"v_cmp_eq_u32 vcc, {r}, v{t}"); A("s_nop 1"); A(f"v_cndmask_b32 v{m+r}, 0, v{t+1}, vcc")

def dump_stamps(g, n, tail):
    A = g.A
    A("s_waitcnt lgkmcnt(0)")
    A(f"s_mov_b32 s80, s{sWS}"); A(f"s_mov_b32 s81, s{sWS+1}"); A(f"s_mov_b32 s82, {WS_SIZE}"); A(f"s_mov_b32 s83, 0x20000")
    A(f"s_lshl_b32 s79, s2, 9"); A(f"s_lshl_b32 s78, s3, 6"); A(f"s_add_u32 s79, s79, s78")
    A(f"s_add_u32 s79, s79, {WS_DBG + (256 if tail else 0)}")
    A(f"v_mov_b32 v2, 0")
    A(f"s_mov_b64 exec, 1")
    for i in range(n):
        A(f"v_mov_b32 v3, s{84+2*i}")
        A(f"buffer_store_dword v3, v2, s[80:83], s79 offen offset:{4*i}")
        A("s_nop 1")
    A(f"s_getreg_b32 s78, hwreg(HW_REG_XCC_ID)")
    A(f"v_mov_b32 v3, s78"); A(f"buffer_store_dword v3, v2, s[80:83], s79 offen offset:60"); A("s_nop 1")
    A(f"v_mov_b32 v3, s75"); A(f"buffer_store_dword v3, v2, s[80:83], s79 offen offset:56")
    A("s_nop 1"); A(f"v_mov_b32 v3, s66"); A(f"buffer_store_dword v3, v2, s[80:83], s79 offen offset:52")
    A(f"s_mov_b64 exec, -1")

def hs2_store(g, pairs, lab):
    A = g.A
    A("s_waitcnt lgkmcnt(0)")
    srd(g, 80, sDBG, 256)
    A("v_mov_b32 v2, 0"); A("s_mov_b64 exec, 1")
    for sg, idx in pairs:
        A(f"v_mov_b32 v3, s{sg}"); A(f"buffer_store_dword v3, v2, s[80:83], s79 offen offset:{4*idx} sc0 sc1"); A("s_nop 1")
    A("s_mov_b64 exec, -1")

def spin_guard(g, cnt, lab_top):
    g.A(f"s_add_u32 s{cnt}, s{cnt}, 1"); g.A(f"s_cmp_lt_u32 s{cnt}, {g.cfg.spin_max}"); g.A(f"s_cbranch_scc1 {lab_top}")

def reduce_a(g, v, t):
    A = g.A
    for ctl in ["row_ror:4", "row_ror:8"]:
        A("s_nop 1")
        for r in range(4): A(f"v_add_f32_dpp v{v+r}, v{v+r}, v{v+r} {ctl} {DPPM}")
    for sw in ["v_permlane16_swap_b32", "v_permlane32_swap_b32"]:
        for r in range(4): A(f"v_mov_b32 v{t+r}, v{v+r}")
        A("s_nop 1")
        for r in range(4): A(f"{sw} v{v+r}, v{t+r}")
        A("s_nop 1")
        for r in range(4): A(f"v_add_f32 v{v+r}, v{v+r}, v{t+r}")


vTAG = 100
def tag_check(g, units, tmp=76):
    A = g.A
    A(f"v_cmp_ne_u64 vcc, v[{units[0]+2}:{units[0]+3}], v[{vTAG}:{vTAG+1}]")
    for n, u in enumerate(units[1:]):
        A(f"v_cmp_ne_u64 s[{tmp}:{tmp+1}], v[{u+2}:{u+3}], v[{vTAG}:{vTAG+1}]")
        if n < len(units) - 2: A(f"s_or_b64 vcc, vcc, s[{tmp}:{tmp+1}]")
    A(f"s_or_b64 s[{tmp}:{tmp+1}], vcc, s[{tmp}:{tmp+1}]")

def poll(g, name, loads, units, cnt=75, pre=None):
    A = g.A
    A(f"s_mov_b32 s{cnt}, 0")
    if pre is not None:
        loads(); pre()
        A(f"s_branch L_{name}_w")
    g.lab(f"L_{name}")
    loads()
    if pre is not None: g.lab(f"L_{name}_w")
    A("s_waitcnt vmcnt(0)")
    tag_check(g, units)
    A(f"s_cbranch_scc0 L_{name}_done")
    spin_guard(g, cnt, f"L_{name}")
    g.lab(f"L_{name}_done")

sX, sK, sV, sWQ, sWO, sWG, sWU, sWD, sOUT, sDBG, sWS = 4, 6, 8, 10, 12, 16, 18, 20, 22, 24, 26
sH, sB, sSP, sBH = 28, 29, 30, 31

def gen(cfg):
    g = G(cfg); A = g.A
    g.L.append(f"; @launch grid=(256,1,1) block=(512,1,1) lds={L_END}")
    g.L.append('.amdgcn_target "amdgcn-amd-amdhsa--gfx950"')
    g.L.append(".text"); g.L.append(f".globl {KNAME}"); g.L.append(".p2align 8"); g.L.append(f".type {KNAME},@function")
    g.lab(KNAME)
    A("s_cmp_ge_u32 s2, 256"); A("s_cbranch_scc1 L_exit")
    A("s_load_dwordx16 s[4:19], s[0:1], 0"); A("s_load_dwordx8 s[20:27], s[0:1], 64")
    g.stamp('start')
    if cfg.codepf:
        A("s_getpc_b64 s[66:67]")
        g.lab("L_pc")
        A("v_lshlrev_b32 v2, 5, v0")
        A("v_cmp_gt_u32 vcc, L_codeend-L_pc-32, v2")
        A("s_and_saveexec_b64 s[68:69], vcc")
        A("s_cbranch_execz L_nopfc")
        A(f"global_load_dwordx4 v[120:123], v2, s[66:67]")
        A(f"global_load_dwordx4 v[124:127], v2, s[66:67] offset:16")
        g.lab("L_nopfc")
        A("s_mov_b64 exec, s[68:69]")
    A("v_lshrrev_b32 v1, 6, v0"); A("v_and_b32 v0, 63, v0"); A("v_readfirstlane_b32 s3, v1")
    A("s_and_b32 s28, s2, 7"); A("s_lshr_b32 s29, s28, 1"); A("s_and_b32 s30, s29, 1")
    A("s_xor_b32 s29, s29, s28"); A("s_and_b32 s29, s29, 1"); A("s_lshr_b32 s28, s28, 2"); A("s_lshl_b32 s28, s28, 1")
    A("s_add_u32 s28, s28, s29"); A("s_lshr_b32 s31, s2, 3")
    if cfg.hmap == 0:
        A("s_and_b32 s29, s31, 7"); A("s_lshl_b32 s29, s29, 2"); A("s_add_u32 s28, s28, s29"); A("s_lshr_b32 s29, s31, 3")
    else:
        A("s_and_b32 s29, s31, 7"); A("s_lshl_b32 s28, s28, 3"); A("s_add_u32 s28, s28, s29"); A("s_lshr_b32 s29, s31, 3")
    A("s_lshl_b32 s31, s29, 5"); A("s_add_u32 s31, s31, s28")
    A("s_cmp_ge_u32 s3, 4"); A("s_cbranch_scc1 L_tail")
    stream(g, cfg)
    tail(g, cfg)
    g.lab("L_exit"); A("s_endpgm")
    g.lab("L_codeend")
    A("s_endpgm")
    g.L.append('.section .rodata,"a"'); g.L.append(".p2align 6"); g.L.append(f".amdhsa_kernel {KNAME}")
    for t in ["next_free_vgpr 256", "next_free_sgpr 102", "accum_offset 128", "group_segment_fixed_size 0",
              "kernarg_size 96", "user_sgpr_count 2", "user_sgpr_kernarg_segment_ptr 1", "system_sgpr_workgroup_id_x 1"]:
        g.L.append("  .amdhsa_" + t)
    g.L.append(".end_amdhsa_kernel")
    return "\n".join(g.L) + "\n"

def stream(g, cfg):
    A = g.A; D = cfg.D; NS = 16; F = cfg.F; LA = cfg.LA
    DB = max(D, cfg.boost)
    assert F == LA and DB + 4 <= LA <= 28
    sKS, sVS, sTS = 32, 36, 40
    sCur, sNxt = 44, 48
    sI, sW4, sM1, sM2, sT = 52, 53, 54, 56, 58
    vZ, vKo4, vVo4 = 5, 8, 12
    vQB, vAcc, vO, vA0, vA1, vMask = 16, 32, 48, 52, 56, 60
    vM, vL, vPP, vT = 64, 65, 66, 68
    A(f"v_lshrrev_b32 v{vT}, 2, v0"); A(f"v_and_b32 v{vT}, 3, v{vT}"); A(f"v_lshlrev_b32 v{vKo4}, 8, v{vT}")
    A(f"v_lshrrev_b32 v{vT}, 4, v0"); A(f"v_lshlrev_b32 v{vT}, 6, v{vT}"); A(f"v_add_u32 v{vKo4}, v{vKo4}, v{vT}")
    A(f"v_and_b32 v{vT}, 3, v0"); A(f"v_lshlrev_b32 v{vT}, 4, v{vT}"); A(f"v_add_u32 v{vKo4}, v{vKo4}, v{vT}")
    A(f"v_lshlrev_b32 v{vVo4}, 4, v0")
    A(f"s_lshl_b32 s{sW4}, s30, 2"); A(f"s_add_u32 s{sW4}, s{sW4}, s3")
    gstride = 16384
    def chunk_off(dst, c, tmp):
        A(f"s_lshr_b32 s{dst}, s{c}, 2"); A(f"s_lshl_b32 s{dst}, s{dst}, 16")
        A(f"s_and_b32 s{tmp}, s{c}, 3"); A(f"s_lshl_b32 s{tmp}, s{tmp}, 10"); A(f"s_add_u32 s{dst}, s{dst}, s{tmp}")
    chunk_off(sCur, sW4, sT)
    for G_ in range(1, 4): A(f"s_add_u32 s{sCur+G_}, s{sCur}, {gstride*G_}")
    for t_ in range(1, 4):
        A(f"v_add_u32 v{vKo4+t_}, {4096*t_}, v{vKo4}"); A(f"v_add_u32 v{vVo4+t_}, {4096*t_}, v{vVo4}")
    A(f"s_lshl_b32 s{sT}, s31, 21")
    A("s_waitcnt lgkmcnt(0)")
    srd(g, sKS, sK, 0x200000, sT); srd(g, sVS, sV, 0x200000, sT)
    sGEN, sTAG, sCL = 60, 62, 64
    def issue(p, nxt):
        u = p & 15
        srdr = sKS if p < 16 else sVS
        so = (sNxt if nxt else sCur) + (u >> 2)
        vo = (vKo4 if p < 16 else vVo4) + (u & 3)
        A(f"buffer_load_dwordx4 a[{4*p}:{4*p+3}], v{vo}, s[{srdr}:{srdr+3}], s{so} offen {cfg.ldflags}")
    npre = min(F, cfg.pre)
    def fill(p):
        if p >= cfg.D0: A(f"s_waitcnt vmcnt({cfg.D0-1})")
        issue(p, False)
    if cfg.q == 'direct' and cfg.bar0 >= 0: A("s_barrier")
    for p in range(npre):
        fill(p)
        if cfg.touch and p == cfg.touch_at:
            A(f"buffer_load_dword v110, v{vVo4}, s[{sVS}:{sVS+3}], s{sCur} offen {cfg.ldflags}")
    g.stamp('s_iss')
    A(f"s_load_dword s{sGEN}, s[{sWS}:{sWS+1}], {hex(WS_GEN)}")
    A(f"s_cmp_ge_u32 s2, {NFFN}"); A(f"s_cselect_b32 s{sT}, {NFFN}, 0"); A(f"s_sub_u32 s65, s2, s{sT}")
    A(f"s_cmp_ge_u32 s2, {2*NFFN}"); A(f"s_cselect_b32 s{sT}, {NFFN}, 0"); A(f"s_sub_u32 s65, s65, s{sT}")
    A(f"s_lshl_b32 s{sCL}, s65, 7"); A(f"s_add_u32 s{sCL}, s{sCL}, {WS_CL}")
    srd(g, sTS, sWS, WS_SIZE)
    onehot_masks(g, vMask, vT)
    A(f"v_and_b32 v{vT}, 1, v0"); A(f"v_cmp_eq_u32 s[{sM1}:{sM1+1}], 1, v{vT}")
    A(f"v_and_b32 v{vT}, 2, v0"); A(f"v_cmp_eq_u32 s[{sM2}:{sM2+1}], 2, v{vT}")
    A(f"v_mov_b32 v{vM}, 0xff7fffff"); A(f"v_mov_b32 v{vL}, 0"); A(f"v_mov_b32 v{vZ}, 0")
    for r in range(4): A(f"v_mov_b32 v{vO+r}, 0")
    A(f"v_lshrrev_b32 v{vT}, 4, v0"); A(f"v_lshlrev_b32 v{vT}, 2, v{vT}"); A(f"v_and_b32 v{vT+1}, 3, v0")
    A(f"v_add_u32 v{vT}, v{vT}, v{vT+1}"); A(f"v_lshlrev_b32 v{vT}, 5, v{vT}")
    A(f"v_lshrrev_b32 v{vT+1}, 2, v0"); A(f"v_and_b32 v{vT+1}, 3, v{vT+1}")
    A(f"s_mov_b32 s{sI}, 0")
    for p in range(npre, F): fill(p)
    A("s_barrier")
    g.stamp('s_bar1')
    q0 = 72
    for w in range(4):
        A(f"ds_read_b128 v[{q0+8*w}:{q0+8*w+3}], v{vT} offset:{L_PART + 512*w}")
        A(f"ds_read_b128 v[{q0+8*w+4}:{q0+8*w+7}], v{vT} offset:{L_PART + 512*w + 16}")
    A("s_waitcnt lgkmcnt(0)")
    for e in range(8):
        A(f"v_add_f32 v{q0+e}, v{q0+e}, v{q0+8+e}"); A(f"v_add_f32 v{q0+16+e}, v{q0+16+e}, v{q0+24+e}")
    for e in range(8): A(f"v_add_f32 v{q0+e}, v{q0+e}, v{q0+16+e}")
    for r in range(4): A(f"v_cvt_pk_bf16_f32 v{q0+8+r}, v{q0+2*r}, v{q0+2*r+1}")
    for t in range(4):
        A(f"v_cmp_eq_u32 vcc, {t}, v{vT+1}"); A("s_nop 1")
        for r in range(4): A(f"v_cndmask_b32 v{vQB+4*t+r}, 0, v{q0+8+r}, vcc")
    g.stamp('s_q')
    A(f"s_add_u32 s{sTAG}, s{sGEN}, {hex(K1)}"); A(f"s_add_u32 s{sTAG+1}, s{sGEN}, {hex(K2)}")
    X = vT
    def qk(n):
        Gi, t = n >> 2, n & 3
        cin = "0" if t == 0 else f"v[{vAcc+4*Gi}:{vAcc+4*Gi+3}]"
        A(f"v_mfma_f32_16x16x32_bf16 v[{vAcc+4*Gi}:{vAcc+4*Gi+3}], a[{4*n}:{4*n+3}], v[{vQB+4*t}:{vQB+4*t+3}], {cin}")
    def buildA(u):
        Gi, t = u >> 2, u & 3
        dst = vA0 if (u & 1) == 0 else vA1
        for r in range(4):
            A(f"v_and_b32_dpp v{dst+r}, v{vPP}, v{vMask+r} row_newbcast:{4*t+Gi} {DPPM}")
    def pv(u):
        n = 16 + u
        src = vA0 if (u & 1) == 0 else vA1
        A(f"v_mfma_f32_16x16x32_bf16 v[{vO}:{vO+3}], v[{src}:{src+3}], a[{4*n}:{4*n+3}], v[{vO}:{vO+3}]")
    def book():
        A(f"s_add_u32 s{sT+1}, s{sI}, 1"); A(f"s_lshl_b32 s{sT}, s{sT+1}, 3"); A(f"s_add_u32 s{sT}, s{sT}, s{sW4}")
        chunk_off(sNxt, sT, sT+1)
        A(f"s_cmp_lt_u32 s{sT}, 128")
        A("s_cbranch_scc0 L_final")
        for G_ in range(1, 4): A(f"s_add_u32 s{sNxt+G_}, s{sNxt}, {gstride*G_}")
        if DB > D:
            A(f"s_cmp_ge_u32 s{sI}, {cfg.burst_from}"); A("s_cselect_b64 vcc, -1, 0")
    def soft(part):
        if part == 0:
            A("s_nop 7")
            for d in range(4):
                def acc(Gi, r): return f"v{vAcc+4*Gi+r}"
                A(f"v_cndmask_b32 v{vT+4}, {acc(d,0)}, {acc(1^d,1)}, s[{sM1}:{sM1+1}]")
                A(f"v_cndmask_b32 v{vT+5}, {acc(2^d,2)}, {acc(3^d,3)}, s[{sM1}:{sM1+1}]")
                A(f"v_cndmask_b32 v{X+d}, v{vT+4}, v{vT+5}, s[{sM2}:{sM2+1}]")
            A("s_nop 1")
            A(f"v_add_f32_dpp v{X}, v{X+1}, v{X} quad_perm:[1,0,3,2] {DPPM}")
            A(f"v_add_f32_dpp v{X+2}, v{X+3}, v{X+2} quad_perm:[1,0,3,2] {DPPM}")
            A("s_nop 1")
            A(f"v_add_f32_dpp v{X}, v{X+2}, v{X} quad_perm:[2,3,0,1] {DPPM}")
            A(f"v_cvt_pk_bf16_f32 v{X}, 0, v{X}"); A(f"v_mul_f32 v{X}, {SCALE}, v{X}"); A(f"v_cvt_pk_bf16_f32 v{X}, 0, v{X}")
            A(f"v_mov_b32 v{X+1}, v{X}")
        elif part == 1:
            wave_reduce(g, X+1, "v_max_f32")
        elif part == 2:
            A("s_nop 0")
            A(f"v_readlane_b32 s{sT}, v{X+1}, 63"); A("s_nop 1")
            A(f"v_max_f32 v{X+1}, s{sT}, v{vM}")
            A(f"v_sub_f32 v{X+2}, v{vM}, v{X+1}"); A(f"v_sub_f32 v{X}, v{X}, v{X+1}")
            A(f"v_mul_f32 v{X+2}, {LOG2E}, v{X+2}"); A(f"v_mul_f32 v{X}, {LOG2E}, v{X}")
            A(f"v_exp_f32 v{X+2}, v{X+2}"); A(f"v_exp_f32 v{X}, v{X}")
            A(f"v_mov_b32 v{vM}, v{X+1}")
        else:
            A(f"v_fma_f32 v{vL}, v{vL}, v{X+2}, v{X}")
            A(f"v_cvt_pk_bf16_f32 v{vPP}, v{X}, v{X}")
            for r in range(4): A(f"v_mul_f32 v{vO+r}, v{vO+r}, v{X+2}")
            buildA(0)
    def comp(j):
        if j == 0:
            for n in range(5): yield ('qk', n)
        elif j <= 11: yield ('qk', j + 4)
        elif j <= 15: yield ('soft', j - 12)
        else: yield ('pv', j - 16)
    def emit_comp(kind, x):
        if 'nocomp' in cfg.diag: return
        if kind == 'qk': qk(x)
        elif kind == 'soft': soft(x)
        else:
            if x < 15: buildA(x + 1)
            else: A("s_nop 1")
            pv(x)
    class Trk:
        def __init__(t, H, C): t.H = list(H); t.C = C
        def wait_to(t, newC, emit):
            if newC > t.C:
                w = len(t.H) - newC
                if emit: A(f"s_waitcnt vmcnt({w})")
                t.C = newC
    def iteration(trk, emit):
        for j in range(32):
            pos = j + LA
            req = [x for (k, x) in comp(j) if k == 'qk'] + [16 + x for (k, x) in comp(j) if k == 'pv']
            newC = trk.C
            if req:
                idx = max(i for i, o in enumerate(trk.H) if o == ('L', max(req)))
                newC = max(newC, idx + 1)
            newC = max(newC, len(trk.H) - (DB - 1))
            if DB > D and emit:
                wn = D - 1
                if len(trk.H) - wn > newC and not (j == 0):
                    A(f"s_cbranch_vccnz L_bs{j}")
                    A(f"s_waitcnt vmcnt({wn})")
                    g.lab(f"L_bs{j}")
                elif len(trk.H) - wn > newC:
                    pass
            trk.wait_to(newC, emit)
            if emit and cfg.stamps == 'it0' and f'j{j}' in PROFILES['it0']:
                A(f"s_cmp_lg_u32 s{sI}, 0"); A(f"s_cbranch_scc1 L_st0_{j}"); g.stamp(f'j{j}'); g.lab(f"L_st0_{j}")
            if j == 0 and emit:
                book()
                if DB > D and len(trk.H) - (D - 1) > trk.C:
                    A(f"s_cbranch_vccnz L_bs0"); A(f"s_waitcnt vmcnt({D-1})"); g.lab("L_bs0")
            if emit: issue(pos & 31, pos >= 32)
            trk.H.append(('N', pos - 32) if pos >= 32 else ('L', pos))
            if emit:
                for (k, x) in comp(j): emit_comp(k, x)
        H2 = [(('L', o[1]) if o[0] == 'N' else (('X',) if o[0] == 'L' else o)) for o in trk.H]
        return Trk(H2, trk.C)
    def final_iteration(H0):
        trk = Trk(H0, 0)
        idx = max(i for i, o in enumerate(trk.H) if o == ('L', 4)); trk.C = idx + 1
        for p in range(LA, 32):
            issue(p, False); trk.H.append(('L', p))
        for j in range(32):
            req = [x for (k, x) in comp(j) if k == 'qk'] + [16 + x for (k, x) in comp(j) if k == 'pv']
            if req:
                idx = max(i for i, o in enumerate(trk.H) if o == ('L', max(req)))
                trk.wait_to(idx + 1, True)
            for (k, x) in comp(j): emit_comp(k, x)
    def endit():
        for G_ in range(4): A(f"s_mov_b32 s{sCur+G_}, s{sNxt+G_}")
        A(f"s_add_u32 s{sI}, s{sI}, 1")
        if 'iters' in cfg.diag:
            A("s_memrealtime s[82:83]"); A("s_waitcnt lgkmcnt(0)")
            A(f"s_lshl_b32 s{sT}, s3, 7"); A(f"s_lshl_b32 s{sT+1}, s{sI}, 2"); A(f"s_add_u32 s{sT}, s{sT}, s{sT+1}")
            A(f"v_mov_b32 v{vT+6}, s{sT}"); A(f"v_mov_b32 v{vT+7}, s82"); A(f"ds_write_b32 v{vT+6}, v{vT+7} offset:15000")
    entry = Trk([('L', p) for p in range(LA)], 0)
    tA = iteration(Trk(entry.H, entry.C), False)
    assert tA.H[-LA:] == entry.H, (tA.H[-LA:], entry.H)
    if DB > D: A("s_mov_b64 vcc, 0")
    g.lab("L_chunk")
    iteration(Trk(entry.H, entry.C), True)
    endit()
    A("s_branch L_chunk")
    g.lab("L_final")
    A("s_cmp_lg_u32 s3, 0"); A("s_cbranch_scc1 L_noclaim"); A("s_cmp_ge_u32 s2, 128"); A("s_cbranch_scc1 L_noclaim")
    A(f"s_mov_b64 s[66:67], s[{sTAG}:{sTAG+1}]")
    A(f"s_atomic_swap_x2 s[66:67], s[{sWS}:{sWS+1}], s{sCL} glc")
    g.lab("L_noclaim")
    final_iteration([('L', p) for p in range(LA)])
    A(f"s_add_u32 s{sI}, s{sI}, 1")
    g.stamp('s_end')
    A("s_cmp_lg_u32 s3, 0"); A("s_cbranch_scc1 L_norole")
    A("s_waitcnt lgkmcnt(0)")
    A(f"s_cmp_eq_u64 s[66:67], s[{sTAG}:{sTAG+1}]"); A("s_cselect_b32 s65, 255, s65")
    A(f"s_sub_u32 s{sT}, s2, {128 - NFFN}"); A("s_cmp_ge_u32 s2, 128"); A(f"s_cselect_b32 s65, s{sT}, s65")
    A(f"v_mov_b32 v{vT}, s65"); A(f"ds_write_b32 v{vZ}, v{vT} offset:{L_ROLE}")
    g.lab("L_norole")
    wave_reduce(g, vL, "v_add_f32")
    t = vT
    A(f"v_and_b32 v{t+4}, 15, v0"); A(f"v_lshlrev_b32 v{t+4}, 5, v{t+4}")
    A(f"v_lshrrev_b32 v{t+5}, 4, v0"); A(f"v_lshlrev_b32 v{t+5}, 4, v{t+5}"); A(f"v_add_u32 v{t+4}, v{t+4}, v{t+5}")
    A(f"s_lshl_b32 s{sT}, s3, 9"); A(f"v_add_u32 v{t+4}, s{sT}, v{t+4}")
    A(f"v_mov_b32 v{t+6}, v{vM}"); A(f"v_mov_b32 v{t+7}, v{vL}")
    A(f"s_lshl_b32 s{sT}, s3, 3"); A(f"v_mov_b32 v{t+5}, s{sT}")
    A("s_mov_b32 exec_hi, 0")
    A(f"ds_write_b128 v{t+4}, v[{vO}:{vO+3}] offset:{L_PART}")
    A("s_mov_b32 exec_lo, 0"); A("s_mov_b32 exec_hi, 0x80000000")
    A(f"ds_write_b64 v{t+5}, v[{t+6}:{t+7}] offset:{L_ML}")
    A("s_mov_b64 exec, -1")
    A("s_waitcnt lgkmcnt(0)")
    A("s_barrier")
    g.stamp('s_bar2')
    if 'iters' in cfg.diag:
        A(f"s_lshl_b32 s{sT}, s3, 7"); A(f"v_lshlrev_b32 v{vT}, 2, v0"); A(f"v_add_u32 v{vT+1}, s{sT}, v{vT}")
        A(f"ds_read_b32 v{vT+2}, v{vT+1} offset:15000"); A("s_waitcnt lgkmcnt(0)")
        A(f"s_lshl_b32 s{sT}, s2, 2"); A(f"s_add_u32 s{sT}, s{sT}, s3"); A(f"s_lshl_b32 s{sT}, s{sT}, 7"); A(f"s_add_u32 s{sT}, s{sT}, {WS_IT}")
        A("s_mov_b32 exec_hi, 0")
        A(f"buffer_store_dword v{vT+2}, v{vT}, s[{sTS}:{sTS+3}], s{sT} offen")
        A("s_mov_b64 exec, -1")
    if 'hs2' in cfg.diag:
        A("s_or_b32 s79, s2, s3"); A("s_cmp_lg_u32 s79, 0"); A("s_cbranch_scc1 L_hs2s")
        hs2_store(g, [(84, 0), (86, 1), (88, 2), (90, 3)], 's')
        g.lab("L_hs2s")
    elif cfg.stamps:
        A(f"s_mov_b32 s75, s{sI}"); A("s_mov_b32 s66, 0")
        dump_stamps(g, 9 if cfg.stamps == 'it0' else 5, False)
    A("s_endpgm")

def tail(g, cfg):
    A = g.A; SC = cfg.SC
    g.lab("L_tail")
    if cfg.tailprio: A(f"s_setprio {cfg.tailprio}")
    A("s_sub_u32 s3, s3, 4")
    sXS, sWQS, sWOS, sWSS, sOS = 32, 36, 40, 44, 52
    sGS, sUS, sDNS = 56, 36, 40
    sODD, sGEN, sR2M = 48, 50, 60
    sT = 68; sJ = 64
    vZ = 9
    A(f"s_lshl_b32 s{sJ}, s29, 1"); A(f"s_add_u32 s{sJ}, s{sJ}, s30")
    A(f"v_mov_b32 v{vZ}, 0")
    def wo_dma(vo):
        A(f"s_lshl_b32 s{sT}, s28, 17")
        srd(g, sWOS, sWO, 128*1024, sT)
        A(f"v_lshrrev_b32 v{vo}, 3, v0"); A(f"v_lshlrev_b32 v{vo}, 10, v{vo}"); A("v_and_b32 v8, 7, v0"); A("v_lshlrev_b32 v8, 4, v8")
        A(f"v_add_u32 v{vo}, v{vo}, v8")
        A(f"s_lshl_b32 s{sT}, s{sJ}, 7"); A(f"s_lshl_b32 s{sT+1}, s3, 15"); A(f"s_add_u32 s{sT}, s{sT}, s{sT+1}")
        A(f"s_lshl_b32 s{sT+2}, s3, 12"); A(f"s_add_u32 s{sT+2}, s{sT+2}, {L_WO}")
        for n in range(4):
            A(f"s_add_u32 m0, s{sT+2}, {n*1024}")
            A(f"s_add_u32 s{sT+3}, s{sT}, {n*8*1024}")
            A(f"buffer_load_dwordx4 v{vo}, s[{sWOS}:{sWOS+3}], s{sT+3} offen {cfg.wflags} lds")
    def ptouch():
        A("s_cmp_lg_u32 s3, 0"); A("s_cbranch_scc1 L_ptd")
        for base in [sOUT, sWG, sWU, sWD]:
            A(f"s_load_dword s67, s[{base}:{base+1}], 0")
        g.lab("L_ptd")
    def wo_tr():
        for T in range(4):
            fr = 96 + 4*T
            A(f"ds_read_b64_tr_b16 a[{fr}:{fr+1}], v13 offset:{T*32*128}")
            A(f"ds_read_b64_tr_b16 a[{fr+2}:{fr+3}], v13 offset:{T*32*128 + 4*128}")
    def mk_tags():
        A(f"s_add_u32 s{sT}, s{sGEN}, {hex(K1)}"); A(f"s_add_u32 s{sT+1}, s{sGEN}, {hex(K2)}")
        A(f"v_mov_b32 v{vTAG}, s{sT}"); A(f"v_mov_b32 v{vTAG+1}, s{sT+1}")

    if cfg.q == 'coop':
        A("v_lshlrev_b32 v2, 4, v0")
        A("v_lshrrev_b32 v3, 2, v0"); A("v_lshlrev_b32 v3, 13, v3"); A("v_and_b32 v8, 3, v0"); A("v_lshlrev_b32 v8, 4, v8")
        A("v_add_u32 v3, v3, v8")
        A("v_lshrrev_b32 v6, 4, v0"); A("v_lshlrev_b32 v6, 10, v6"); A("v_and_b32 v7, 15, v0")
        A("v_lshlrev_b32 v4, 6, v7"); A("v_add_u32 v4, v4, v6")
        A("v_lshlrev_b32 v5, 3, v7"); A("v_add_u32 v5, v5, v6"); A(f"s_lshl_b32 s{sT}, s{sJ}, 7"); A(f"v_add_u32 v5, s{sT}, v5")
        A(f"s_lshl_b32 s70, s{sJ}, 19"); A(f"s_lshl_b32 s71, s28, 8"); A(f"s_add_u32 s70, s70, s71")
        A(f"s_lshl_b32 s71, s3, 6"); A(f"s_add_u32 s70, s70, s71")
        A(f"s_lshl_b32 s72, s3, 12"); A(f"s_add_u32 s72, s72, {L_WQ}")
        A("s_waitcnt lgkmcnt(0)")
        g.stamp('t_args')
        A(f"s_load_dword s{sGEN}, s[{sWS}:{sWS+1}], {hex(WS_GEN)}")
        srd(g, sXS, sX, 4096)
        for m in range(4): A(f"buffer_load_dwordx4 v[{64+4*m}:{64+4*m+3}], v4, s[{sXS}:{sXS+3}], 0 offen offset:{16*m}")
        A(f"buffer_load_dwordx2 v[80:81], v5, s[{sXS}:{sXS+3}], 0 offen")
        srd(g, sWQS, sWQ, 512*8192)
        for n in range(4):
            A(f"s_add_u32 m0, s72, {n*1024}")
            A(f"s_add_u32 s73, s70, {n*16*8192}")
            A(f"buffer_load_dwordx4 v3, s[{sWQS}:{sWQS+3}], s73 offen {cfg.wqflags} lds")
        A("v_mov_b32 v13, s72")
        nlate = 0
        srd(g, sWSS, sWS, WS_SIZE)
        A("v_lshrrev_b32 v11, 4, v0"); A("v_lshlrev_b32 v11, 3, v11"); A("v_lshrrev_b32 v12, 2, v0"); A("v_and_b32 v12, 3, v12")
        A("v_add_u32 v11, v11, v12"); A("v_and_b32 v12, 3, v0"); A("v_lshlrev_b32 v12, 3, v12")
        A("v_lshlrev_b32 v10, 6, v11"); A("v_add_u32 v13, v13, v10"); A("v_add_u32 v13, v13, v12")
        A(f"s_mul_i32 s74, s3, {4*XN_ROW}")
        A("v_lshrrev_b32 v15, 4, v0"); A(f"v_mul_u32_u24 v15, {XN_ROW}, v15"); A("v_lshlrev_b32 v7, 3, v7"); A("v_add_u32 v15, v15, v7")
        A("v_add_u32 v15, s74, v15")
        A("v_and_b32 v14, 3, v0"); A(f"v_mul_u32_u24 v14, {XN_ROW}, v14"); A("v_lshrrev_b32 v7, 4, v0"); A("v_lshlrev_b32 v7, 4, v7")
        A("v_add_u32 v14, v14, v7"); A("v_add_u32 v14, s74, v14")
        A(f"s_waitcnt vmcnt({4 + nlate})")
        g.stamp('t_x')
        for r in range(16):
            A(f"v_lshlrev_b32 v{24+2*r}, 16, v{64+r}"); A(f"v_and_b32 v{25+2*r}, 0xffff0000, v{64+r}")
        A("v_pk_add_f32 v[56:57], v[24:25], v[26:27]"); A("v_pk_add_f32 v[58:59], v[28:29], v[30:31]")
        for r in range(4, 16, 2):
            A(f"v_pk_add_f32 v[56:57], v[56:57], v[{24+2*r}:{25+2*r}]"); A(f"v_pk_add_f32 v[58:59], v[58:59], v[{26+2*r}:{27+2*r}]")
        A("v_pk_add_f32 v[56:57], v[56:57], v[58:59]")
        A("v_add_f32 v56, v56, v57")
        for ctl in ["row_ror:8", "row_ror:4", "row_ror:2", "row_ror:1"]:
            A("s_nop 1"); A(f"v_add_f32_dpp v56, v56, v56 {ctl} {DPPM}")
        A(f"v_mul_f32 v56, {INV512}, v56"); A("v_mov_b32 v57, v56")
        A("v_pk_add_f32 v[60:61], v[24:25], v[56:57] neg_lo:[0,1] neg_hi:[0,1]")
        A("v_pk_mul_f32 v[58:59], v[60:61], v[60:61]")
        for r in range(1, 16):
            A(f"v_pk_add_f32 v[60:61], v[{24+2*r}:{25+2*r}], v[56:57] neg_lo:[0,1] neg_hi:[0,1]")
            A(f"v_pk_fma_f32 v[58:59], v[60:61], v[60:61], v[58:59]")
        A("v_add_f32 v58, v58, v59")
        A("v_cvt_pk_bf16_f32 v56, 0, v56")
        A("v_lshlrev_b32 v24, 16, v80"); A("v_and_b32 v25, 0xffff0000, v80"); A("v_lshlrev_b32 v26, 16, v81"); A("v_and_b32 v27, 0xffff0000, v81")
        fillv = [f"v_sub_f32 v{24+e}, v{24+e}, v56" for e in range(4)] + [f"v_cvt_pk_bf16_f32 v{24+e}, 0, v{24+e}" for e in range(4)]
        for n, ctl in enumerate(["row_ror:8", "row_ror:4", "row_ror:2", "row_ror:1"]):
            A(f"v_add_f32_dpp v58, v58, v58 {ctl} {DPPM}"); A(fillv[2*n]); A(fillv[2*n+1])
        A(f"v_mul_f32 v58, {INV512}, v58"); A("v_cvt_pk_bf16_f32 v58, 0, v58"); A(f"v_add_f32 v58, {EPS}, v58"); A("v_cvt_pk_bf16_f32 v58, 0, v58")
        A("v_sqrt_f32 v58, v58"); A("s_nop 0"); A("v_cvt_pk_bf16_f32 v58, 0, v58"); A("v_rcp_f32 v59, v58"); A("s_nop 0")
        for e in range(4):
            A(f"v_mul_f32 v60, v{24+e}, v59"); A(f"v_fma_f32 v{24+e}, -v60, v58, v{24+e}"); A(f"v_fma_f32 v{24+e}, v{24+e}, v59, v60")
        A("v_cvt_pk_bf16_f32 v24, v24, v25"); A("v_cvt_pk_bf16_f32 v25, v26, v27")
        A(f"ds_write_b64 v15, v[24:25] offset:{L_XN}")
        g.stamp('t_ln')
        A(f"s_waitcnt vmcnt({nlate}) lgkmcnt(0)")
        g.stamp('t_bar0')
        for T in range(2): A(f"ds_read_b128 v[{24+4*T}:{24+4*T+3}], v14 offset:{L_XN + 64*T}")
        for T in range(2):
            for ct in range(2):
                fr = 40 + (T*2+ct)*4
                A(f"ds_read_b64_tr_b16 v[{fr}:{fr+1}], v13 offset:{T*32*64 + ct*32}")
                A(f"ds_read_b64_tr_b16 v[{fr+2}:{fr+3}], v13 offset:{T*32*64 + ct*32 + 4*64}")
        mk_tags()
        for b in range(4):
            A(f"v_mov_b32 v{64+4*b+2}, v{vTAG}"); A(f"v_mov_b32 v{64+4*b+3}, v{vTAG+1}")
        A(f"s_lshl_b32 s70, s28, 15"); A(f"s_lshl_b32 s71, s{sJ}, 10"); A("s_add_u32 s70, s70, s71")
        A(f"s_lshl_b32 s71, s3, 8"); A("s_add_u32 s70, s70, s71"); A(f"s_add_u32 s70, s70, {WS_QP}")
        A("s_waitcnt lgkmcnt(0)")
        for T in range(2):
            for ct in range(2):
                fr = 40 + (T*2+ct)*4
                cin = "0" if T == 0 else f"v[{56+4*ct}:{56+4*ct+3}]"
                A(f"v_mfma_f32_16x16x32_bf16 v[{56+4*ct}:{56+4*ct+3}], v[{24+4*T}:{24+4*T+3}], v[{fr}:{fr+3}], {cin}")
        A(f"s_lshl_b32 s72, s28, 15"); A(f"s_lshl_b32 s73, s29, 13"); A("s_add_u32 s72, s72, s73")
        A(f"s_lshl_b32 s73, s3, 11"); A("s_add_u32 s72, s72, s73"); A(f"s_add_u32 s72, s72, {WS_QP}")
        A("s_nop 4")
        for b in range(4):
            A(f"v_mov_b32 v{64+4*b}, v{56+b}"); A(f"v_mov_b32 v{64+4*b+1}, v{60+b}")
        A("s_mov_b64 exec, 0xffff")
        for b in range(4):
            if b: A("s_add_u32 s70, s70, 8192")
            A(f"buffer_store_dwordx4 v[{64+4*b}:{64+4*b+3}], v2, s[{sWSS}:{sWSS+3}], s70 offen {SC}")
        A("s_mov_b64 exec, -1")
        g.stamp('t_pub')
        A("v_lshrrev_b32 v8, 4, v0"); A("v_lshlrev_b32 v8, 7, v8"); A("v_and_b32 v7, 15, v0"); A("v_lshlrev_b32 v7, 2, v7")
        A("v_add_u32 v8, v8, v7"); A("s_lshl_b32 s73, s3, 9"); A("v_add_u32 v8, s73, v8"); A(f"v_add_u32 v8, {L_PART}, v8")
        if cfg.qwait: A("s_waitcnt vmcnt(0)")
        def q_loads():
            A(f"buffer_load_dwordx4 v[24:27], v2, s[{sWSS}:{sWSS+3}], s72 offen {SC}")
            A(f"buffer_load_dwordx4 v[28:31], v2, s[{sWSS}:{sWSS+3}], s72 offen offset:1024 {SC}")
        poll(g, "qpoll", q_loads, [24, 28])
        g.stamp('t_got')
        A("v_add_f32 v24, v24, v28"); A("v_add_f32 v25, v25, v29")
        A("ds_write2_b32 v8, v24, v25 offset1:16")
        A("s_waitcnt lgkmcnt(0)")
        A("s_barrier")
        g.stamp('t_bar1')
    else:
        rotS = 78
        if cfg.rot: A(f"s_lshl_b32 s{rotS}, s29, 2")
        else: A(f"s_mov_b32 s{rotS}, 0")
        A(f"v_add_u32 v2, s{rotS}, v0"); A("v_and_b32 v2, 15, v2"); A("v_and_b32 v8, 48, v0"); A("v_add_u32 v2, v2, v8")
        A("v_lshlrev_b32 v2, 4, v2")
        A("v_lshrrev_b32 v3, 4, v0"); A("v_lshlrev_b32 v3, 20, v3"); A("v_and_b32 v8, 15, v0"); A("v_lshlrev_b32 v8, 4, v8")
        A("v_add_u32 v3, v3, v8")
        A(f"s_lshl_b32 s{sT}, s3, 14"); A(f"s_lshl_b32 s{sT+1}, s28, 8"); A(f"s_add_u32 s{sT}, s{sT}, s{sT+1}")
        A(f"s_lshl_b32 s{sT+1}, s29, 10")
        A("s_waitcnt lgkmcnt(0)")
        g.stamp('t_args')
        A(f"s_load_dword s{sGEN}, s[{sWS}:{sWS+1}], {hex(WS_GEN)}")
        srd(g, sXS, sX, 1024, sT+1)
        A(f"buffer_load_dwordx4 v[4:7], v2, s[{sXS}:{sXS+3}], 0 offen")
        srd(g, sWSS, sWS, WS_SIZE)
        srd(g, sWQS, sWQ, 512*8192)
        for n in range(16):
            A(f"s_add_u32 s79, s{rotS}, {n}"); A("s_and_b32 s79, s79, 15"); A("s_lshl_b32 s79, s79, 16"); A(f"s_add_u32 s79, s79, s{sT}")
            for e in range(2):
                idx = 2*n + e
                if cfg.bar0 == idx: A("s_barrier")
                if e == 1: A("s_add_u32 s79, s79, 8192")
                A(f"buffer_load_dwordx4 a[{4*idx}:{4*idx+3}], v3, s[{sWQS}:{sWQS+3}], s79 offen {cfg.wqflags}")
        if cfg.bar0 == 32: A("s_barrier")
        vMask = 16
        onehot_masks(g, vMask, 20)
        A(f"s_waitcnt vmcnt(32)")
        g.stamp('t_x')
        unpack8(g, 4, 24)
        layernorm8(g, 24, 32, sT)
        for w, (a0, a1) in enumerate([(26, 27), (28, 29), (30, 31)]):
            A(f"s_cmp_eq_u32 s3, {w+1}"); A(f"s_cselect_b64 s[72:73], -1, 0")
            A(f"v_cndmask_b32 v24, v24, v{a0}, s[72:73]"); A(f"v_cndmask_b32 v25, v25, v{a1}, s[72:73]")
        A("v_lshrrev_b32 v38, 16, v24"); A("v_or_b32 v36, v24, v38"); A("v_lshrrev_b32 v38, 16, v25"); A("v_or_b32 v37, v25, v38")
        g.stamp('t_ln')
        vA0, vA1, vQ = 44, 48, 40
        def buildAq(idx):
            n, e = idx >> 1, idx & 1
            dst = vA0 if (idx & 1) == 0 else vA1
            for r in range(4): A(f"v_and_b32_dpp v{dst+r}, v{36+e}, v{vMask+r} row_newbcast:{n} {DPPM}")
        A("s_nop 1")
        buildAq(0)
        for idx in range(32):
            if idx < 31: buildAq(idx + 1)
            if idx % 2 == 0 or idx == 31: A(f"s_waitcnt vmcnt({max(0, 30 - idx)})")
            if idx == 31: A("s_nop 1")
            src = vA0 if (idx & 1) == 0 else vA1
            cin = "0" if idx == 0 else f"v[{vQ}:{vQ+3}]"
            A(f"v_mfma_f32_16x16x32_bf16 v[{vQ}:{vQ+3}], v[{src}:{src+3}], a[{4*idx}:{4*idx+3}], {cin}")
        A("v_and_b32 v52, 15, v0"); A("v_lshlrev_b32 v52, 5, v52"); A("v_lshrrev_b32 v53, 4, v0"); A("v_lshlrev_b32 v53, 4, v53")
        A("v_add_u32 v52, v52, v53"); A(f"s_lshl_b32 s{sT}, s3, 9"); A(f"v_add_u32 v52, s{sT}, v52")
        A("s_nop 1")
        A("s_mov_b32 exec_hi, 0")
        A(f"ds_write_b128 v52, v[{vQ}:{vQ+3}] offset:{L_PART}")
        A("s_mov_b64 exec, -1")
        A("s_waitcnt lgkmcnt(0)")
        g.stamp('t_pub')
        A("s_barrier")
        g.stamp('t_bar1')
        mk_tags()

    wo_dma(3)
    if cfg.ptouch: ptouch()
    sU = 65
    A(f"s_lshl_b32 s{sU}, s28, 2"); A(f"s_add_u32 s{sU}, s{sU}, s29"); A(f"s_lshl_b32 s{sU}, s{sU}, 1"); A(f"s_add_u32 s{sU}, s{sU}, s30")
    srd(g, sXS, sX, 4096); srd(g, sOS, sOUT, 4096)
    A(f"s_cmp_lt_u32 s2, 128"); A("s_cbranch_scc1 L_nox"); A("s_cmp_lg_u32 s3, 0"); A("s_cbranch_scc1 L_nox")
    A("v_and_b32 v6, 3, v0"); A("v_lshlrev_b32 v4, 1, v6"); A("s_sub_u32 s73, s2, 128"); A("s_lshl_b32 s73, s73, 3")
    for r in range(4): A(f"buffer_load_ushort v{102+r}, v4, s[{sXS}:{sXS+3}], s73 offen offset:{1024*r}")
    A("s_waitcnt vmcnt(0)")
    for r in range(4): A(f"v_lshlrev_b32 v{102+r}, 16, v{102+r}")
    g.lab("L_nox")
    A("v_lshrrev_b32 v11, 4, v0"); A("v_lshlrev_b32 v11, 3, v11"); A("v_lshrrev_b32 v12, 2, v0"); A("v_and_b32 v12, 3, v12")
    A("v_add_u32 v11, v11, v12"); A("v_and_b32 v12, 3, v0"); A("v_lshlrev_b32 v12, 3, v12")
    A(f"s_lshl_b32 s{sT+2}, s3, 5"); A(f"s_add_u32 s{sT+2}, s{sT+2}, {L_WO}")
    A("v_lshlrev_b32 v13, 7, v11"); A("v_add_u32 v13, v13, v12"); A(f"v_add_u32 v13, s{sT+2}, v13")
    A("s_waitcnt vmcnt(0)")
    A("v_lshlrev_b32 v2, 3, v0")
    A(f"s_lshl_b32 s71, s{sU}, 10"); A(f"s_add_u32 s71, s71, {WS_OP}")
    A("s_lshl_b32 s68, s28, 2"); A("s_add_u32 s68, s68, s3")
    A(f"s_lshl_b32 s73, s68, 11"); A(f"s_add_u32 s73, s73, {WS_OP}")
    A("v_and_b32 v14, 3, v0"); A(f"v_mul_u32_u24 v14, {OA_ROW}, v14"); A("v_lshrrev_b32 v15, 4, v0"); A("v_lshlrev_b32 v15, 4, v15")
    A("v_add_u32 v14, v14, v15")
    A("v_lshlrev_b32 v15, 2, v0"); A(f"s_mul_i32 s69, s3, {OA_ROW}"); A("v_add_u32 v15, s69, v15")
    A("s_lshl_b32 s69, s28, 13"); A(f"s_lshl_b32 s76, s{sJ}, 10"); A("s_add_u32 s69, s69, s76"); A("s_lshl_b32 s76, s3, 8"); A("s_add_u32 s69, s69, s76")
    A("v_lshlrev_b32 v4, 4, v0")
    A(f"s_mov_b32 s{sODD}, 0xaaaaaaaa"); A(f"s_mov_b32 s{sODD+1}, 0xaaaaaaaa")
    A(f"v_mov_b32 v54, v{vTAG}"); A(f"v_mov_b32 v55, v{vTAG+1}")
    A(f"v_mov_b32 v58, v{vTAG}"); A(f"v_mov_b32 v59, v{vTAG+1}")
    A("s_waitcnt lgkmcnt(0)")
    g.stamp('t_pf')
    A("s_barrier")
    g.stamp('t_bar2')
    A(f"ds_read_b32 v16, v{vZ} offset:{L_ROLE}")
    wo_tr()
    A("s_cmp_lg_u32 s3, s29"); A("s_cbranch_scc1 L_noop")
    for w in range(4): A(f"ds_read_b64 v[{24+2*w}:{25+2*w}], v2 offset:{L_PART + 512*w}")
    A(f"ds_read_b128 v[40:43], v{vZ} offset:{L_ML}"); A(f"ds_read_b128 v[44:47], v{vZ} offset:{L_ML+16}")
    A("s_waitcnt lgkmcnt(0)")
    A("v_max_f32 v48, v40, v42"); A("v_max3_f32 v48, v48, v44, v46")
    for r, mr in enumerate([40, 42, 44, 46]): A(f"v_sub_f32 v{32+r}, v{mr}, v48")
    for r in range(4): A(f"v_mul_f32 v{32+r}, {LOG2E}, v{32+r}")
    for r in range(4): A(f"v_exp_f32 v{32+r}, v{32+r}")
    A("s_nop 0")
    A("v_mul_f32 v49, v32, v41"); A("v_mul_f32 v50, v32, v24"); A("v_mul_f32 v51, v32, v25")
    for w, lr in [(1, 43), (2, 45), (3, 47)]:
        A(f"v_fmac_f32 v49, v{32+w}, v{lr}"); A(f"v_fmac_f32 v50, v{32+w}, v{24+2*w}"); A(f"v_fmac_f32 v51, v{32+w}, v{25+2*w}")
    A("v_cvt_pk_bf16_f32 v52, v50, v51")
    A(f"v_cndmask_b32 v53, v48, v49, s[{sODD}:{sODD+1}]")
    A(f"buffer_store_dwordx4 v[52:55], v4, s[{sWSS}:{sWSS+3}], s71 offen {SC}")
    g.lab("L_noop")
    g.stamp('t_op')
    A("s_waitcnt lgkmcnt(0)")
    A("v_readfirstlane_b32 s66, v16")
    A(f"s_cmp_ge_u32 s66, {NFFN}"); A("s_cbranch_scc1 L_nodma")
    srd(g, sGS, sWG, 512*2752); srd(g, sUS, sWU, 512*2752); srd(g, sDNS, sWD, 1376*1024)
    A("v_lshrrev_b32 v3, 2, v0"); A("v_mul_u32_u24 v3, 2752, v3"); A("v_and_b32 v8, 3, v0"); A("v_lshlrev_b32 v8, 4, v8")
    A("v_add_u32 v3, v3, v8")
    A(f"s_mul_i32 s80, s3, {8*16*2752}"); A("s_lshl_b32 s81, s66, 6"); A("s_add_u32 s80, s80, s81")
    A("s_lshl_b32 s81, s3, 13"); A(f"s_add_u32 s82, s81, {L_G}")
    for k in range(8):
        A(f"s_add_u32 m0, s82, {k*1024}"); A(f"s_add_u32 s83, s80, {k*16*2752}")
        A(f"buffer_load_dwordx4 v3, s[{sGS}:{sGS+3}], s83 offen {cfg.wflags} lds")
        A(f"s_add_u32 m0, s82, {k*1024 + 32768}"); A("s_nop 0")
        A(f"buffer_load_dwordx4 v3, s[{sUS}:{sUS+3}], s83 offen {cfg.wflags} lds")
    if not cfg.dnlate: down_dma(g, cfg, sDNS)
    g.lab("L_nodma")
    def o_loads():
        A(f"buffer_load_dwordx4 v[24:27], v4, s[{sWSS}:{sWSS+3}], s73 offen {SC}")
        A(f"buffer_load_dwordx4 v[28:31], v4, s[{sWSS}:{sWSS+3}], s73 offen offset:1024 {SC}")
    poll(g, "opoll", o_loads, [24, 28])
    g.stamp('t_o')
    A(f"v_mov_b32_dpp v32, v25 quad_perm:[0,0,2,2] {DPPM}"); A(f"v_mov_b32_dpp v33, v25 quad_perm:[1,1,3,3] {DPPM}")
    A(f"v_mov_b32_dpp v34, v29 quad_perm:[0,0,2,2] {DPPM}"); A(f"v_mov_b32_dpp v35, v29 quad_perm:[1,1,3,3] {DPPM}")
    A("v_max_f32 v40, v32, v34"); A("v_sub_f32 v41, v32, v40"); A("v_sub_f32 v42, v34, v40")
    A(f"v_mul_f32 v41, {LOG2E}, v41"); A(f"v_mul_f32 v42, {LOG2E}, v42")
    A("v_exp_f32 v41, v41"); A("v_exp_f32 v42, v42")
    A("v_lshlrev_b32 v36, 16, v24"); A("v_and_b32 v37, 0xffff0000, v24"); A("v_lshlrev_b32 v38, 16, v28"); A("v_and_b32 v39, 0xffff0000, v28")
    A("v_mul_f32 v43, v41, v33"); A("v_fmac_f32 v43, v42, v35"); A("v_rcp_f32 v43, v43"); A("s_nop 0")
    A("v_mul_f32 v41, v41, v43"); A("v_mul_f32 v42, v42, v43")
    A("v_mul_f32 v44, v41, v36"); A("v_mul_f32 v45, v41, v37"); A("v_fmac_f32 v44, v42, v38"); A("v_fmac_f32 v45, v42, v39")
    A("v_cvt_pk_bf16_f32 v44, v44, v45")
    A(f"ds_write_b32 v15, v44 offset:{L_OA}")
    A("s_waitcnt lgkmcnt(0)")
    A("s_barrier")
    for T in range(4): A(f"ds_read_b128 v[{24+4*T}:{24+4*T+3}], v14 offset:{L_OA + 64*T}")
    for T in range(4):
        A(f"s_waitcnt lgkmcnt({3-T})")
        cin = "0" if T == 0 else "v[40:43]"
        A(f"v_mfma_f32_16x16x32_bf16 v[40:43], v[{24+4*T}:{24+4*T+3}], a[{96+4*T}:{96+4*T+3}], {cin}")
    A("s_mov_b64 exec, 0xffff")
    A("s_nop 7")
    A("v_cvt_pk_bf16_f32 v56, v40, v41"); A("v_cvt_pk_bf16_f32 v57, v42, v43")
    A(f"buffer_store_dwordx4 v[56:59], v4, s[{sWSS}:{sWSS+3}], s69 offen {SC}")
    A("s_mov_b64 exec, -1")
    g.stamp('t_y')
    tail_rest(g, cfg, sWSS, sXS, sOS, sGS, sUS, sDNS, sR2M, vZ)

def down_dma(g, cfg, sDNS):
    A = g.A
    A("v_lshrrev_b32 v3, 4, v0"); A("v_lshlrev_b32 v3, 10, v3"); A("v_and_b32 v8, 15, v0"); A("v_lshlrev_b32 v8, 4, v8")
    A("v_add_u32 v3, v3, v8")
    A("s_lshl_b32 s80, s66, 15"); A("s_lshl_b32 s81, s3, 8"); A("s_add_u32 s80, s80, s81")
    A("s_lshl_b32 s81, s3, 13"); A(f"s_add_u32 s83, s81, {L_DN}")
    for k in range(8):
        A(f"s_add_u32 m0, s83, {k*1024}"); A(f"s_add_u32 s79, s80, {k*4096}")
        A(f"buffer_load_dwordx4 v3, s[{sDNS}:{sDNS+3}], s79 offen {cfg.wflags} lds")

def unpack_units(g, units, dst, tmp):
    A = g.A
    for n, u in enumerate(units):
        d = dst if n == 0 else tmp
        A(f"v_lshlrev_b32 v{d}, 16, v{u}"); A(f"v_and_b32 v{d+1}, 0xffff0000, v{u}")
        A(f"v_lshlrev_b32 v{d+2}, 16, v{u+1}"); A(f"v_and_b32 v{d+3}, 0xffff0000, v{u+1}")
        if n:
            for r in range(4): A(f"v_add_f32 v{dst+r}, v{dst+r}, v{tmp+r}")

def tail_rest(g, cfg, sWSS, sXS, sOS, sGS, sUS, sDNS, sR2M, vZ):
    A = g.A; SC = cfg.SC
    A(f"s_cmp_lt_u32 s66, {NFFN}"); A("s_cbranch_scc1 L_ffn")
    A(f"s_cmp_ge_u32 s66, {NFFN + 128}"); A("s_cbranch_scc1 L_fin")
    A("s_cmp_lg_u32 s3, 0"); A("s_cbranch_scc1 L_fin")
    sTau = 68
    A(f"s_sub_u32 s{sTau}, s66, {NFFN}")
    A("v_lshrrev_b32 v5, 2, v0"); A("v_and_b32 v6, 3, v0")
    A("v_lshlrev_b32 v2, 13, v5"); A("v_lshlrev_b32 v3, 4, v6"); A("v_add_u32 v2, v2, v3")
    A(f"s_lshl_b32 s71, s{sTau}, 6"); A(f"s_add_u32 s72, s71, {16*8192}")
    A(f"s_lshl_b32 s80, s{sTau}, 6"); A(f"s_add_u32 s80, s80, {WS_HM}")
    A(f"v_mov_b32 v10, v{vTAG}"); A(f"v_mov_b32 v11, v{vTAG+1}")
    def y_loads():
        A(f"buffer_load_dwordx4 v[16:19], v2, s[{sWSS}:{sWSS+3}], s71 offen {SC}")
        A(f"buffer_load_dwordx4 v[20:23], v2, s[{sWSS}:{sWSS+3}], s72 offen {SC}")
    poll(g, "r1poll", y_loads, [16, 20])
    g.stamp('t_poll1')
    unpack_units(g, [16, 20], 48, 52)
    reduce_a(g, 48, 52)
    for r in range(4): A(f"v_cvt_pk_bf16_f32 v{48+r}, 0, v{48+r}")
    for r in range(4): A(f"v_add_f32 v{48+r}, v{48+r}, v{102+r}")
    A("v_cvt_pk_bf16_f32 v8, v48, v49"); A("v_cvt_pk_bf16_f32 v9, v50, v51")
    A(f"buffer_store_dwordx4 v[8:11], v2, s[{sWSS}:{sWSS+3}], s80 offen {SC}")
    g.stamp('t_mid')
    A(f"v_mov_b32 v7, {32*8192}"); A(f"v_cmp_gt_u32 s[{sR2M}:{sR2M+1}], {NFFN-32}, v5"); A("s_nop 1")
    A(f"v_cndmask_b32 v7, 0, v7, s[{sR2M}:{sR2M+1}]"); A("v_add_u32 v7, v7, v2")
    A(f"s_lshl_b32 s71, s{sTau}, 6"); A(f"s_add_u32 s71, s71, {WS_P2}")
    A(f"s_add_u32 s72, s71, {16*8192}")
    A("v_lshlrev_b32 v56, 16, v8"); A("v_and_b32 v57, 0xffff0000, v8"); A("v_lshlrev_b32 v58, 16, v9"); A("v_and_b32 v59, 0xffff0000, v9")
    A("v_lshlrev_b32 v4, 1, v6"); A(f"s_lshl_b32 s74, s{sTau}, 3")
    def p_loads():
        A(f"buffer_load_dwordx4 v[16:19], v2, s[{sWSS}:{sWSS+3}], s71 offen {SC}")
        A(f"buffer_load_dwordx4 v[20:23], v2, s[{sWSS}:{sWSS+3}], s72 offen {SC}")
        A(f"buffer_load_dwordx4 v[24:27], v7, s[{sWSS}:{sWSS+3}], s71 offen {SC}")
    poll(g, "r2poll", p_loads, [16, 20, 24])
    A(f"v_cndmask_b32 v24, 0, v24, s[{sR2M}:{sR2M+1}]"); A(f"v_cndmask_b32 v25, 0, v25, s[{sR2M}:{sR2M+1}]")
    unpack_units(g, [16, 20, 24], 48, 52)
    reduce_a(g, 48, 52)
    for r in range(4): A(f"v_cvt_pk_bf16_f32 v{48+r}, 0, v{48+r}")
    for r in range(4): A(f"v_add_f32 v{48+r}, v{48+r}, v{56+r}")
    for r in range(4): A(f"v_cvt_pk_bf16_f32 v{48+r}, 0, v{48+r}")
    A("s_mov_b64 exec, 15")
    for r in range(4): A(f"buffer_store_short_d16_hi v{48+r}, v4, s[{sOS}:{sOS+3}], s74 offen offset:{1024*r}")
    A(f"s_cmp_lg_u32 s{sTau}, 0"); A("s_cbranch_scc1 L_nogen")
    A(f"s_mov_b32 s71, {WS_GEN}"); A("s_mov_b64 exec, 1"); A("v_mov_b32 v4, 0")
    A(f"buffer_store_dword v{vTAG}, v4, s[{sWSS}:{sWSS+3}], s71 offen {SC}")
    g.lab("L_nogen")
    A("s_mov_b64 exec, -1")
    g.stamp('t_end')
    A("s_branch L_fin")

    g.lab("L_ffn")
    if cfg.dnlate: down_dma(g, cfg, sDNS)
    A("v_lshrrev_b32 v11, 4, v0"); A("v_lshlrev_b32 v11, 3, v11"); A("v_lshrrev_b32 v12, 2, v0"); A("v_and_b32 v12, 3, v12")
    A("v_add_u32 v11, v11, v12"); A("v_and_b32 v12, 3, v0"); A("v_lshlrev_b32 v12, 3, v12")
    A("s_lshl_b32 s69, s3, 13"); A(f"s_add_u32 s72, s69, {L_G}"); A(f"s_add_u32 s73, s69, {L_DN}")
    A("v_lshlrev_b32 v16, 6, v11"); A("v_add_u32 v16, v16, v12"); A("v_add_u32 v16, s72, v16")
    A("v_add_u32 v17, 0x8000, v16")
    A("v_lshlrev_b32 v18, 8, v11"); A("v_add_u32 v18, v18, v12"); A("v_add_u32 v18, s73, v18")
    A("v_lshlrev_b32 v2, 5, v0"); A("s_lshl_b32 s68, s3, 11"); A("s_and_b32 s69, s66, 15"); A("s_lshl_b32 s69, s69, 13")
    A("s_add_u32 s68, s68, s69"); A(f"s_add_u32 s68, s68, {WS_HM}")
    def h_loads():
        A(f"buffer_load_dwordx4 v[40:43], v2, s[{sWSS}:{sWSS+3}], s68 offen {SC}")
        A(f"buffer_load_dwordx4 v[44:47], v2, s[{sWSS}:{sWSS+3}], s68 offen offset:16 {SC}")
    def dn_frag(n):
        ct, hf = n >> 1, n & 1
        fr = 64 + 4*ct + 2*hf
        A(f"ds_read_b64_tr_b16 a[{fr}:{fr+1}], v18 offset:{ct*32 + hf*4*256}")
    def frags():
        A("v_lshlrev_b32 v3, 4, v0"); A(f"s_mul_i32 s69, s3, {HN_ROW}"); A("v_add_u32 v3, s69, v3")
        A("v_and_b32 v4, 3, v0"); A(f"v_mul_u32_u24 v4, {HN_ROW}, v4"); A("v_lshrrev_b32 v5, 4, v0"); A("v_lshlrev_b32 v5, 4, v5")
        A("v_add_u32 v4, v4, v5"); A("s_lshl_b32 s69, s3, 8"); A("v_add_u32 v4, s69, v4")
        A("v_lshlrev_b32 v6, 2, v0"); A("v_add_u32 v6, s69, v6")
        A("s_mov_b32 s78, 0x07060302"); A("s_mov_b32 s79, 0x05040100")
        for T in range(4):
            for tile in range(4):
                mat, ct = tile >> 1, tile & 1
                base = 16 if mat == 0 else 17
                fr = (T*4 + tile)*4; off = T*32*64 + ct*32
                A(f"ds_read_b64_tr_b16 a[{fr}:{fr+1}], v{base} offset:{off}")
                A(f"ds_read_b64_tr_b16 a[{fr+2}:{fr+3}], v{base} offset:{off + 4*64}")
            A("s_waitcnt lgkmcnt(0)")
        if not cfg.dnlate:
            for n in range(16):
                dn_frag(n)
                if n == 7: A("s_waitcnt lgkmcnt(0)")
    frags()
    def dn_all():
        A("s_waitcnt vmcnt(0)")
        for n in range(16):
            dn_frag(n)
            if n == 7: A("s_waitcnt lgkmcnt(4)")
    poll(g, "hpoll", h_loads, [40, 44], pre=dn_all if cfg.dnlate else None)
    g.stamp('t_poll1')
    A("v_perm_b32 v36, v44, v40, s79"); A("v_perm_b32 v37, v44, v40, s78"); A("v_perm_b32 v38, v45, v41, s79"); A("v_perm_b32 v39, v45, v41, s78")
    for b in range(4): A(f"ds_write_b32 v6, v{36+b} offset:{L_HN + b*HN_ROW}")
    A("s_waitcnt lgkmcnt(0)"); A("s_barrier")
    A(f"ds_read_b128 v[36:39], v3 offset:{L_HN}")
    A("s_mov_b32 s77, 0x07060302")
    A("s_waitcnt lgkmcnt(0)")
    unpack8(g, 36, 24)
    layernorm8(g, 24, 32, 69)
    for r in range(4): A(f"v_perm_b32 v{36+r}, v{24+2*r+1}, v{24+2*r}, s77")
    A(f"ds_write_b128 v3, v[36:39] offset:{L_HN}")
    A("s_waitcnt lgkmcnt(0)"); A("s_barrier")
    for T in range(4): A(f"ds_read_b128 v[{24+4*T}:{24+4*T+3}], v4 offset:{L_HN + 64*T}")
    acc = 64
    A("v_lshlrev_b32 v2, 4, v0"); A("s_lshl_b32 s68, s3, 10"); A("v_add_u32 v3, s68, v2")
    for T in range(4):
        A(f"s_waitcnt lgkmcnt({3-T})")
        for c in range(4):
            cin = "0" if T == 0 else f"v[{acc+4*c}:{acc+4*c+3}]"
            A(f"v_mfma_f32_16x16x32_bf16 v[{acc+4*c}:{acc+4*c+3}], v[{24+4*T}:{24+4*T+3}], a[{(T*4+c)*4}:{(T*4+c)*4+3}], {cin}")
    A("s_mov_b64 exec, 0xffff")
    A("s_nop 4")
    for c in range(4): A(f"ds_write_b128 v3, v[{acc+4*c}:{acc+4*c+3}] offset:{L_P + c*256}")
    A("s_mov_b64 exec, -1")
    A("s_waitcnt lgkmcnt(0)"); A("s_barrier")
    g.stamp('t_mid')
    for w in range(4): A(f"ds_read_b128 v[{24+4*w}:{24+4*w+3}], v2 offset:{L_P + w*1024}")
    A("v_lshrrev_b32 v4, 5, v0"); A(f"v_mul_u32_u24 v4, {2*ACT_ROW}, v4"); A("v_and_b32 v5, 31, v0"); A("v_lshlrev_b32 v5, 1, v5")
    A("v_add_u32 v4, v4, v5"); A(f"s_mul_i32 s68, s3, {4*ACT_ROW}"); A("v_add_u32 v4, s68, v4")
    A("v_and_b32 v5, 3, v0"); A(f"v_mul_u32_u24 v5, {ACT_ROW}, v5"); A("v_lshrrev_b32 v6, 4, v0"); A("v_lshlrev_b32 v6, 4, v6")
    A("v_add_u32 v5, v5, v6"); A("v_add_u32 v5, s68, v5")
    A("v_mov_b32 v40, 0x3d372713")
    A("s_waitcnt lgkmcnt(0)")
    for r in range(4):
        A(f"v_add_f32 v{24+r}, v{24+r}, v{28+r}"); A(f"v_add_f32 v{32+r}, v{32+r}, v{36+r}")
    for r in range(4): A(f"v_add_f32 v{24+r}, v{24+r}, v{32+r}")
    A("s_nop 1")
    A("v_permlane32_swap_b32 v24, v26"); A("v_permlane32_swap_b32 v25, v27")
    A("s_nop 1")
    for r in range(4): A(f"v_cvt_pk_bf16_f32 v{24+r}, 0, v{24+r}")
    def gelu_steps(gt, up, t):
        return [f"v_mul_f32 v{t}, v{gt}, v{gt}", f"v_mul_f32 v{t}, v{t}, v{gt}", f"v_fma_f32 v{t}, v{t}, v40, v{gt}",
                f"v_mul_f32 v{t}, 0xc0135761, v{t}", f"v_exp_f32 v{t}, v{t}", None, f"v_add_f32 v{t}, 1.0, v{t}",
                f"v_rcp_f32 v{t}, v{t}", None, f"v_mul_f32 v{t}, v{t}, v{gt}", f"v_cvt_pk_bf16_f32 v{t}, 0, v{t}",
                f"v_mul_f32 v{t}, v{t}, v{up}", f"v_cvt_pk_bf16_f32 v{t}, 0, v{t}"]
    for a, b in zip(gelu_steps(24, 26, 28), gelu_steps(25, 27, 32)):
        if a is None: A("s_nop 0")
        else: A(a); A(b)
    A(f"ds_write_b16_d16_hi v4, v28 offset:{L_ACT}"); A(f"ds_write_b16_d16_hi v4, v32 offset:{L_ACT + ACT_ROW}")
    A("s_lshl_b32 s68, s66, 13"); A("s_lshl_b32 s69, s3, 11"); A("s_add_u32 s68, s68, s69"); A(f"s_add_u32 s68, s68, {WS_P2}")
    A("s_waitcnt lgkmcnt(0)")
    A(f"ds_read_b128 v[24:27], v5 offset:{L_ACT}")
    A("s_waitcnt lgkmcnt(0)")
    for c in range(8):
        A(f"v_mfma_f32_16x16x32_bf16 v[{acc+4*c}:{acc+4*c+3}], v[24:27], a[{64+4*c}:{64+4*c+3}], 0")
    A("s_mov_b64 exec, 0xffff"); A("s_nop 3")
    for c in range(8):
        a = acc + 4*c
        A(f"v_cvt_pk_bf16_f32 v{a}, v{a}, v{a+1}"); A(f"v_cvt_pk_bf16_f32 v{a+1}, v{a+2}, v{a+3}")
        A(f"v_mov_b32 v{a+2}, v{vTAG}"); A(f"v_mov_b32 v{a+3}, v{vTAG+1}")
        A(f"buffer_store_dwordx4 v[{a}:{a+3}], v2, s[{sWSS}:{sWSS+3}], s68 offen offset:{256*c} {SC}")
    A("s_mov_b64 exec, -1")
    g.stamp('t_end')
    g.lab("L_fin")
    if 'hs2' in cfg.diag:
        A("s_cmp_lg_u32 s3, 0"); A("s_cbranch_scc1 L_hs2x")
        A("s_cmp_lg_u32 s2, 0"); A("s_cbranch_scc1 L_hs2a")
        A("s_mov_b32 s79, 0"); hs2_store(g, [(90, 4), (94, 5), (66, 15)], 'a')
        g.lab("L_hs2a")
        A("s_cmp_lg_u32 s66, 0"); A("s_cbranch_scc1 L_hs2b")
        A("s_mov_b32 s79, 0"); hs2_store(g, [(96, 12), (98, 13), (100, 14)], 'b')
        g.lab("L_hs2b")
        A(f"s_sub_u32 s78, s66, {NFFN}"); A("s_cmp_ge_u32 s78, 4"); A("s_cbranch_scc1 L_hs2x")
        A("s_lshl_b32 s79, s78, 2"); hs2_store(g, [(100, 8)], 'c')
        A("s_cmp_lg_u32 s78, 0"); A("s_cbranch_scc1 L_hs2x")
        A("s_mov_b32 s79, 0"); hs2_store(g, [(96, 6), (98, 7)], 'd')
        g.lab("L_hs2x")
    elif cfg.stamps: dump_stamps(g, 9, True)
    A("s_endpgm")

if __name__ == "__main__":
    cfg = Cfg()
    import argparse
    ap = argparse.ArgumentParser()
    ap.add_argument("-o", default="k.s")
    ap.add_argument("--D", type=int, default=5); ap.add_argument("--LA", type=int, default=28)
    ap.add_argument("--pre", type=int, default=16); ap.add_argument("--D0", type=int, default=5)
    ap.add_argument("--stamps", default=None); ap.add_argument("--wflags", default="nt"); ap.add_argument("--ldflags", default="nt")
    ap.add_argument("--sc", default="sc0 sc1"); ap.add_argument("--tailprio", type=int, default=3)
    ap.add_argument("--diag", default=""); ap.add_argument("--bar0", type=int, default=24)
    ap.add_argument("--nocodepf", action="store_true"); ap.add_argument("--notouch", action="store_true"); ap.add_argument("--noptouch", action="store_true")
    ap.add_argument("--boost", type=int, default=0); ap.add_argument("--burst_from", type=int, default=14)
    ap.add_argument("--qwait", type=int, default=1)
    ap.add_argument("--dnlate", type=int, default=1)
    ap.add_argument("--touch_at", type=int, default=0)
    ap.add_argument("--hmap", type=int, default=0)
    ap.add_argument("--norot", action="store_true"); ap.add_argument("--wqflags", default="nt"); ap.add_argument("--q", default="coop")
    a = ap.parse_args()
    if 'hs2' in a.diag: a.stamps = 'main'
    cfg.D = a.D; cfg.LA = a.LA; cfg.F = a.LA; cfg.pre = a.pre; cfg.D0 = a.D0; cfg.stamps = a.stamps
    cfg.wflags = a.wflags; cfg.ldflags = a.ldflags; cfg.SC = a.sc; cfg.tailprio = a.tailprio; cfg.diag = a.diag; cfg.bar0 = a.bar0
    cfg.codepf = not a.nocodepf; cfg.touch = not a.notouch; cfg.ptouch = not a.noptouch
    cfg.boost = a.boost if a.boost else max(a.D, a.LA - 4); cfg.burst_from = a.burst_from
    cfg.rot = not a.norot; cfg.wqflags = a.wqflags; cfg.q = a.q; cfg.qwait = a.qwait; cfg.hmap = a.hmap; cfg.touch_at = a.touch_at; cfg.dnlate = a.dnlate
    open(a.o, "w").write(gen(cfg))
```

```python
import sys
KNAME = "sequential_preLN__gqa_block_cached__geglu_ffn__decode_kernel"

class Cfg:
    D = 5; LA = 28; F = 28; pre = 16; D0 = 5; bar0 = 24; rot = True; wqflags = 'nt'; codepf = True; D2 = 32
    boost = 24; burst_from = 14; touch = True; q = 'coop'; ptouch = True
    ldflags = "nt"; wflags = "nt"
    stamps = None
    SC = "sc0 sc1"
    spin_max = 1 << 18
    tailprio = 3
    diag = ''

WS_Y2   = 0
WS_OP   = 0x40000
WS_P2   = 0x80000
WS_HM   = 0xD8000
WS_CL   = 0xF8000
WS_GEN  = 0xFC000
WS_QP   = 0x100000
WS_DBG  = 0x220000
WS_IT   = 0x240000
WS_SIZE = 0x280000
K1 = 0x9E3779B9; K2 = 0x7F4A7C15
NFFN = 43
L_XN   = 5248
XN_ROW = 144
L_QV   = 1024
L_PART = 2048
L_ML   = 4096
L_FLAG = L_ML + 32
L_PROG = L_ML + 36
L_MODE = L_ML + 40
L_ROLE = L_ML + 44
L_OA   = 4160
OA_ROW = 272
L_HN   = 5248
HN_ROW = 1040
L_P    = L_HN + 4*HN_ROW
L_ACT  = L_P + 4096
ACT_ROW = 80
L_WQ   = 16384
L_WO   = 32768
L_G    = 49152
L_U    = L_G + 32768
L_DN   = L_U + 32768
L_END  = L_DN + 32768
assert L_OA + 4*OA_ROW <= L_HN and L_ACT + 16*ACT_ROW <= L_WQ and L_HN % 16 == 0 and L_P % 16 == 0 and L_ACT % 16 == 0

SCALE = "0x3db504f3"; LOG2E = "0x3fb8aa3b"; EPS = "0x3727c5ac"; INV512 = "0x3b000000"
DPPM = "row_mask:0xf bank_mask:0xf"

PROFILES = {
  'main': {'start':0, 's_q':1, 's_end':2, 's_bar2':3,
           't_bar1':1, 't_op':2, 't_o':3, 't_bar2':4, 't_y':5, 't_poll1':6, 't_mid':7, 't_end':8},
  'it0':  {'start':0, 's_iss':1, 's_bar1':2, 's_q':3, 'j0':4, 'j5':5, 'j11':6, 'j16':7, 'j31':8,
           't_args':1, 't_x':2, 't_ln':3, 't_bar0':4, 't_pub':5, 't_got':6, 't_bar1':7, 't_pf':8},
  'clr':  {'start':0, 's_c0':1, 's_c1':2, 's_c2':3, 's_q':4},
  'pro':  {'start':0, 's_iss':1, 's_bar1':2, 's_q':3, 's_it0':4,
           't_args':1, 't_x':2, 't_ln':3, 't_bar0':4, 't_pub':5, 't_got':6, 't_bar1':7, 't_pf':8},
}

class G:
    def __init__(s, cfg): s.L = []; s.cfg = cfg
    def A(s, t): s.L.append("  " + t)
    def lab(s, n): s.L.append(n + ":")
    def stamp(s, name):
        p = s.cfg.stamps
        if p and name in PROFILES[p]:
            i = PROFILES[p][name]
            s.A(f"s_memrealtime s[{84+2*i}:{85+2*i}]")

def srd(g, d, base, size, off_sgpr=None):
    if off_sgpr is None:
        g.A(f"s_mov_b32 s{d}, s{base}"); g.A(f"s_mov_b32 s{d+1}, s{base+1}")
    else:
        g.A(f"s_add_u32 s{d}, s{base}, s{off_sgpr}"); g.A(f"s_addc_u32 s{d+1}, s{base+1}, 0")
    g.A(f"s_mov_b32 s{d+2}, {size}"); g.A(f"s_mov_b32 s{d+3}, 0x20000")

def wave_reduce(g, v, op):
    for ctl in ["row_ror:8", "row_ror:4", "row_ror:2", "row_ror:1"]:
        g.A("s_nop 1"); g.A(f"{op}_dpp v{v}, v{v}, v{v} {ctl} {DPPM}")
    g.A("s_nop 1"); g.A(f"{op}_dpp v{v}, v{v}, v{v} row_bcast:15 row_mask:0xa bank_mask:0xf")
    g.A("s_nop 1"); g.A(f"{op}_dpp v{v}, v{v}, v{v} row_bcast:31 row_mask:0xc bank_mask:0xf")

def layernorm8(g, x, t, s_tmp):
    A = g.A
    t0, t1, t2, t3 = t, t+1, t+2, t+3
    A(f"v_add_f32 v{t0}, v{x}, v{x+1}"); A(f"v_add_f32 v{t1}, v{x+2}, v{x+3}")
    A(f"v_add_f32 v{t2}, v{x+4}, v{x+5}"); A(f"v_add_f32 v{t3}, v{x+6}, v{x+7}")
    A(f"v_add_f32 v{t0}, v{t0}, v{t1}"); A(f"v_add_f32 v{t2}, v{t2}, v{t3}"); A(f"v_add_f32 v{t0}, v{t0}, v{t2}")
    wave_reduce(g, t0, "v_add_f32")
    A(f"v_mov_b32 v{t1}, {INV512}")
    A(f"v_readlane_b32 s{s_tmp}, v{t0}, 63")
    A("s_nop 1")
    A(f"v_mul_f32 v{t1}, s{s_tmp}, v{t1}")
    A(f"v_sub_f32 v{t2}, v{x}, v{t1}")
    A(f"v_mul_f32 v{t0}, v{t2}, v{t2}")
    for e in range(1, 8):
        A(f"v_sub_f32 v{t2}, v{x+e}, v{t1}"); A(f"v_fmac_f32 v{t0}, v{t2}, v{t2}")
    A(f"v_cvt_pk_bf16_f32 v{t1}, 0, v{t1}")
    steps = [("row_ror:8", DPPM), ("row_ror:4", DPPM), ("row_ror:2", DPPM), ("row_ror:1", DPPM),
             ("row_bcast:15", "row_mask:0xa bank_mask:0xf"), ("row_bcast:31", "row_mask:0xc bank_mask:0xf")]
    fill = [f"v_sub_f32 v{x+e}, v{x+e}, v{t1}" for e in range(8)] + [f"v_cvt_pk_bf16_f32 v{x+e}, 0, v{x+e}" for e in range(8)]
    fi = 0
    for ctl, m in steps:
        A(fill[fi]); A(fill[fi+1]); fi += 2
        A(f"v_add_f32_dpp v{t0}, v{t0}, v{t0} {ctl} {m}")
    A(fill[fi]); fi += 1
    A(f"v_mov_b32 v{t2}, {INV512}")
    A(f"v_readlane_b32 s{s_tmp}, v{t0}, 63")
    while fi < 16:
        A(fill[fi]); fi += 1
    A(f"v_mul_f32 v{t2}, s{s_tmp}, v{t2}")
    A(f"v_cvt_pk_bf16_f32 v{t2}, 0, v{t2}")
    A(f"v_add_f32 v{t2}, {EPS}, v{t2}")
    A(f"v_cvt_pk_bf16_f32 v{t2}, 0, v{t2}")
    A(f"v_sqrt_f32 v{t2}, v{t2}")
    A("s_nop 0")
    A(f"v_cvt_pk_bf16_f32 v{t2}, 0, v{t2}")
    A(f"v_rcp_f32 v{t3}, v{t2}")
    A("s_nop 0")
    for e in range(8):
        A(f"v_mul_f32 v{t0}, v{x+e}, v{t3}")
        A(f"v_fma_f32 v{x+e}, -v{t0}, v{t2}, v{x+e}")
        A(f"v_fma_f32 v{x+e}, v{x+e}, v{t3}, v{t0}")
        A(f"v_cvt_pk_bf16_f32 v{x+e}, 0, v{x+e}")

def unpack8(g, src, dst):
    for r in range(4):
        g.A(f"v_lshlrev_b32 v{dst+2*r}, 16, v{src+r}")
        g.A(f"v_and_b32 v{dst+2*r+1}, 0xffff0000, v{src+r}")

def onehot_masks(g, m, t):
    A = g.A
    A(f"v_and_b32 v{t}, 15, v0"); A(f"v_and_b32 v{t+1}, 1, v0"); A(f"v_lshlrev_b32 v{t+1}, 4, v{t+1}")
    A(f"v_mov_b32 v{t+2}, 0xffff"); A(f"v_lshlrev_b32 v{t+1}, v{t+1}, v{t+2}"); A(f"v_lshrrev_b32 v{t}, 1, v{t}")
    for r in range(4):
        A(f"v_cmp_eq_u32 vcc, {r}, v{t}"); A("s_nop 1"); A(f"v_cndmask_b32 v{m+r}, 0, v{t+1}, vcc")

def dump_stamps(g, n, tail):
    A = g.A
    A("s_waitcnt lgkmcnt(0)")
    A(f"s_mov_b32 s80, s{sWS}"); A(f"s_mov_b32 s81, s{sWS+1}"); A(f"s_mov_b32 s82, {WS_SIZE}"); A(f"s_mov_b32 s83, 0x20000")
    A(f"s_lshl_b32 s79, s2, 9"); A(f"s_lshl_b32 s78, s3, 6"); A(f"s_add_u32 s79, s79, s78")
    A(f"s_add_u32 s79, s79, {WS_DBG + (256 if tail else 0)}")
    A(f"v_mov_b32 v2, 0")
    A(f"s_mov_b64 exec, 1")
    for i in range(n):
        A(f"v_mov_b32 v3, s{84+2*i}")
        A(f"buffer_store_dword v3, v2, s[80:83], s79 offen offset:{4*i}")
        A("s_nop 1")
    A(f"s_getreg_b32 s78, hwreg(HW_REG_XCC_ID)")
    A(f"v_mov_b32 v3, s78"); A(f"buffer_store_dword v3, v2, s[80:83], s79 offen offset:60"); A("s_nop 1")
    A(f"v_mov_b32 v3, s75"); A(f"buffer_store_dword v3, v2, s[80:83], s79 offen offset:56")
    A("s_nop 1"); A(f"v_mov_b32 v3, s66"); A(f"buffer_store_dword v3, v2, s[80:83], s79 offen offset:52")
    A(f"s_mov_b64 exec, -1")

def hs2_store(g, pairs, lab):
    A = g.A
    A("s_waitcnt lgkmcnt(0)")
    srd(g, 80, sDBG, 256)
    A("v_mov_b32 v2, 0"); A("s_mov_b64 exec, 1")
    for sg, idx in pairs:
        A(f"v_mov_b32 v3, s{sg}"); A(f"buffer_store_dword v3, v2, s[80:83], s79 offen offset:{4*idx} sc0 sc1"); A("s_nop 1")
    A("s_mov_b64 exec, -1")

def spin_guard(g, cnt, lab_top):
    g.A(f"s_add_u32 s{cnt}, s{cnt}, 1"); g.A(f"s_cmp_lt_u32 s{cnt}, {g.cfg.spin_max}"); g.A(f"s_cbranch_scc1 {lab_top}")

def reduce_a(g, v, t):
    A = g.A
    for ctl in ["row_ror:4", "row_ror:8"]:
        A("s_nop 1")
        for r in range(4): A(f"v_add_f32_dpp v{v+r}, v{v+r}, v{v+r} {ctl} {DPPM}")
    for sw in ["v_permlane16_swap_b32", "v_permlane32_swap_b32"]:
        for r in range(4): A(f"v_mov_b32 v{t+r}, v{v+r}")
        A("s_nop 1")
        for r in range(4): A(f"{sw} v{v+r}, v{t+r}")
        A("s_nop 1")
        for r in range(4): A(f"v_add_f32 v{v+r}, v{v+r}, v{t+r}")


vTAG = 100
def tag_check(g, units, tmp=76, w32=False):
    A = g.A
    def cmp(dst, u):
        if w32: A(f"v_cmp_ne_u32 {dst}, v{u+3}, v{vTAG}")
        else: A(f"v_cmp_ne_u64 {dst}, v[{u+2}:{u+3}], v[{vTAG}:{vTAG+1}]")
    cmp("vcc", units[0])
    for n, u in enumerate(units[1:]):
        cmp(f"s[{tmp}:{tmp+1}]", u)
        if n < len(units) - 2: A(f"s_or_b64 vcc, vcc, s[{tmp}:{tmp+1}]")
    A(f"s_or_b64 s[{tmp}:{tmp+1}], vcc, s[{tmp}:{tmp+1}]")

def pack4(g, src, dst, sel):
    for r in range(3): g.A(f"v_perm_b32 v{dst+r}, v{src+r}, v{src+3}, s{sel+r}")

def unpack4(g, u, tmp, sel):
    g.A(f"v_perm_b32 v{tmp}, v{u}, v{u+1}, s{sel}")
    g.A(f"v_perm_b32 v{u+3}, v{tmp}, v{u+2}, s{sel+1}")

def poll(g, name, loads, units, cnt=75, pre=None, w32=False):
    A = g.A
    A(f"s_mov_b32 s{cnt}, 0")
    if pre is not None:
        loads(); pre()
        A(f"s_branch L_{name}_w")
    g.lab(f"L_{name}")
    loads()
    if pre is not None: g.lab(f"L_{name}_w")
    A("s_waitcnt vmcnt(0)")
    tag_check(g, units, w32=w32)
    A(f"s_cbranch_scc0 L_{name}_done")
    spin_guard(g, cnt, f"L_{name}")
    g.lab(f"L_{name}_done")

sX, sK, sV, sWQ, sWO, sWG, sWU, sWD, sOUT, sDBG, sWS = 4, 6, 8, 10, 12, 16, 18, 20, 22, 24, 26
sH, sB, sSP, sBH = 28, 29, 30, 31

def gen(cfg):
    g = G(cfg); A = g.A
    g.L.append(f"; @launch grid=(256,1,1) block=(512,1,1) lds={L_END}")
    g.L.append('.amdgcn_target "amdgcn-amd-amdhsa--gfx950"')
    g.L.append(".text"); g.L.append(f".globl {KNAME}"); g.L.append(".p2align 8"); g.L.append(f".type {KNAME},@function")
    g.lab(KNAME)
    A("s_cmp_ge_u32 s2, 256"); A("s_cbranch_scc1 L_exit")
    A("s_load_dwordx16 s[4:19], s[0:1], 0"); A("s_load_dwordx8 s[20:27], s[0:1], 64")
    g.stamp('start')
    if cfg.codepf:
        A("s_getpc_b64 s[66:67]")
        g.lab("L_pc")
        A("v_lshlrev_b32 v2, 5, v0")
        A("v_cmp_gt_u32 vcc, L_codeend-L_pc-32, v2")
        A("s_and_saveexec_b64 s[68:69], vcc")
        A("s_cbranch_execz L_nopfc")
        A(f"global_load_dwordx4 v[120:123], v2, s[66:67]")
        A(f"global_load_dwordx4 v[124:127], v2, s[66:67] offset:16")
        g.lab("L_nopfc")
        A("s_mov_b64 exec, s[68:69]")
    A("v_lshrrev_b32 v1, 6, v0"); A("v_and_b32 v0, 63, v0"); A("v_readfirstlane_b32 s3, v1")
    A("s_and_b32 s28, s2, 7"); A("s_lshr_b32 s29, s28, 1"); A("s_and_b32 s30, s29, 1")
    A("s_xor_b32 s29, s29, s28"); A("s_and_b32 s29, s29, 1"); A("s_lshr_b32 s28, s28, 2"); A("s_lshl_b32 s28, s28, 1")
    A("s_add_u32 s28, s28, s29"); A("s_lshr_b32 s31, s2, 3")
    if cfg.hmap == 0:
        A("s_and_b32 s29, s31, 7"); A("s_lshl_b32 s29, s29, 2"); A("s_add_u32 s28, s28, s29"); A("s_lshr_b32 s29, s31, 3")
    else:
        A("s_and_b32 s29, s31, 7"); A("s_lshl_b32 s28, s28, 3"); A("s_add_u32 s28, s28, s29"); A("s_lshr_b32 s29, s31, 3")
    A("s_lshl_b32 s31, s29, 5"); A("s_add_u32 s31, s31, s28")
    A("s_cmp_ge_u32 s3, 4"); A("s_cbranch_scc1 L_tail")
    stream(g, cfg)
    tail(g, cfg)
    g.lab("L_exit"); A("s_endpgm")
    g.lab("L_codeend")
    A("s_endpgm")
    g.L.append('.section .rodata,"a"'); g.L.append(".p2align 6"); g.L.append(f".amdhsa_kernel {KNAME}")
    for t in ["next_free_vgpr 256", "next_free_sgpr 102", "accum_offset 128", "group_segment_fixed_size 0",
              "kernarg_size 96", "user_sgpr_count 2", "user_sgpr_kernarg_segment_ptr 1", "system_sgpr_workgroup_id_x 1"]:
        g.L.append("  .amdhsa_" + t)
    g.L.append(".end_amdhsa_kernel")
    return "\n".join(g.L) + "\n"

def stream(g, cfg):
    A = g.A; D = cfg.D; NS = 16; F = cfg.F; LA = cfg.LA
    DB = max(D, cfg.boost)
    assert F == LA and DB + 4 <= LA <= 28
    sKS, sVS, sTS = 32, 36, 40
    sCur, sNxt = 44, 48
    sI, sW4, sM1, sM2, sT = 52, 53, 54, 56, 58
    vZ, vKo4, vVo4 = 5, 8, 12
    vQB, vAcc, vO, vA0, vA1, vMask = 16, 32, 48, 52, 56, 60
    vM, vL, vPP, vT = 64, 65, 66, 68
    A(f"v_lshrrev_b32 v{vT}, 2, v0"); A(f"v_and_b32 v{vT}, 3, v{vT}"); A(f"v_lshlrev_b32 v{vKo4}, 8, v{vT}")
    A(f"v_lshrrev_b32 v{vT}, 4, v0"); A(f"v_lshlrev_b32 v{vT}, 6, v{vT}"); A(f"v_add_u32 v{vKo4}, v{vKo4}, v{vT}")
    A(f"v_and_b32 v{vT}, 3, v0"); A(f"v_lshlrev_b32 v{vT}, 4, v{vT}"); A(f"v_add_u32 v{vKo4}, v{vKo4}, v{vT}")
    A(f"v_lshlrev_b32 v{vVo4}, 4, v0")
    A(f"s_lshl_b32 s{sW4}, s30, 2"); A(f"s_add_u32 s{sW4}, s{sW4}, s3")
    gstride = 16384
    def chunk_off(dst, c, tmp):
        A(f"s_lshr_b32 s{dst}, s{c}, 2"); A(f"s_lshl_b32 s{dst}, s{dst}, 16")
        A(f"s_and_b32 s{tmp}, s{c}, 3"); A(f"s_lshl_b32 s{tmp}, s{tmp}, 10"); A(f"s_add_u32 s{dst}, s{dst}, s{tmp}")
    chunk_off(sCur, sW4, sT)
    for G_ in range(1, 4): A(f"s_add_u32 s{sCur+G_}, s{sCur}, {gstride*G_}")
    for t_ in range(1, 4):
        A(f"v_add_u32 v{vKo4+t_}, {4096*t_}, v{vKo4}"); A(f"v_add_u32 v{vVo4+t_}, {4096*t_}, v{vVo4}")
    A(f"s_lshl_b32 s{sT}, s31, 21")
    A("s_waitcnt lgkmcnt(0)")
    srd(g, sKS, sK, 0x200000, sT); srd(g, sVS, sV, 0x200000, sT)
    sGEN, sTAG, sCL = 60, 62, 64
    def issue(p, nxt):
        u = p & 15
        srdr = sKS if p < 16 else sVS
        so = (sNxt if nxt else sCur) + (u >> 2)
        vo = (vKo4 if p < 16 else vVo4) + (u & 3)
        A(f"buffer_load_dwordx4 a[{4*p}:{4*p+3}], v{vo}, s[{srdr}:{srdr+3}], s{so} offen {cfg.ldflags}")
    npre = min(F, cfg.pre)
    def fill(p):
        if p >= cfg.D0: A(f"s_waitcnt vmcnt({cfg.D0-1})")
        issue(p, False)
    if cfg.q == 'direct' and cfg.bar0 >= 0: A("s_barrier")
    for p in range(npre):
        fill(p)
        if cfg.touch and p == cfg.touch_at:
            A(f"buffer_load_dword v110, v{vVo4}, s[{sVS}:{sVS+3}], s{sCur} offen {cfg.ldflags}")
    g.stamp('s_iss')
    A(f"s_load_dword s{sGEN}, s[{sWS}:{sWS+1}], {hex(WS_GEN)}")
    A(f"s_cmp_ge_u32 s2, {NFFN}"); A(f"s_cselect_b32 s{sT}, {NFFN}, 0"); A(f"s_sub_u32 s65, s2, s{sT}")
    A(f"s_cmp_ge_u32 s2, {2*NFFN}"); A(f"s_cselect_b32 s{sT}, {NFFN}, 0"); A(f"s_sub_u32 s65, s65, s{sT}")
    A(f"s_lshl_b32 s{sCL}, s65, 7"); A(f"s_add_u32 s{sCL}, s{sCL}, {WS_CL}")
    srd(g, sTS, sWS, WS_SIZE)
    onehot_masks(g, vMask, vT)
    A(f"v_and_b32 v{vT}, 1, v0"); A(f"v_cmp_eq_u32 s[{sM1}:{sM1+1}], 1, v{vT}")
    A(f"v_and_b32 v{vT}, 2, v0"); A(f"v_cmp_eq_u32 s[{sM2}:{sM2+1}], 2, v{vT}")
    A(f"v_mov_b32 v{vM}, 0xff7fffff"); A(f"v_mov_b32 v{vL}, 0"); A(f"v_mov_b32 v{vZ}, 0")
    for r in range(4): A(f"v_mov_b32 v{vO+r}, 0")
    A(f"v_lshrrev_b32 v{vT}, 4, v0"); A(f"v_lshlrev_b32 v{vT}, 2, v{vT}"); A(f"v_and_b32 v{vT+1}, 3, v0")
    A(f"v_add_u32 v{vT}, v{vT}, v{vT+1}"); A(f"v_lshlrev_b32 v{vT}, 5, v{vT}")
    A(f"v_lshrrev_b32 v{vT+1}, 2, v0"); A(f"v_and_b32 v{vT+1}, 3, v{vT+1}")
    A(f"s_mov_b32 s{sI}, 0")
    for p in range(npre, F): fill(p)
    A("s_barrier")
    g.stamp('s_bar1')
    q0 = 72
    for w in range(4):
        A(f"ds_read_b128 v[{q0+8*w}:{q0+8*w+3}], v{vT} offset:{L_PART + 512*w}")
        A(f"ds_read_b128 v[{q0+8*w+4}:{q0+8*w+7}], v{vT} offset:{L_PART + 512*w + 16}")
    A("s_waitcnt lgkmcnt(0)")
    for e in range(8):
        A(f"v_add_f32 v{q0+e}, v{q0+e}, v{q0+8+e}"); A(f"v_add_f32 v{q0+16+e}, v{q0+16+e}, v{q0+24+e}")
    for e in range(8): A(f"v_add_f32 v{q0+e}, v{q0+e}, v{q0+16+e}")
    for r in range(4): A(f"v_cvt_pk_bf16_f32 v{q0+8+r}, v{q0+2*r}, v{q0+2*r+1}")
    for t in range(4):
        A(f"v_cmp_eq_u32 vcc, {t}, v{vT+1}"); A("s_nop 1")
        for r in range(4): A(f"v_cndmask_b32 v{vQB+4*t+r}, 0, v{q0+8+r}, vcc")
    g.stamp('s_q')
    A(f"s_add_u32 s{sTAG}, s{sGEN}, {hex(K1)}"); A(f"s_add_u32 s{sTAG+1}, s{sGEN}, {hex(K2)}")
    X = vT
    def qk(n):
        Gi, t = n >> 2, n & 3
        cin = "0" if t == 0 else f"v[{vAcc+4*Gi}:{vAcc+4*Gi+3}]"
        A(f"v_mfma_f32_16x16x32_bf16 v[{vAcc+4*Gi}:{vAcc+4*Gi+3}], a[{4*n}:{4*n+3}], v[{vQB+4*t}:{vQB+4*t+3}], {cin}")
    def buildA(u):
        Gi, t = u >> 2, u & 3
        dst = vA0 if (u & 1) == 0 else vA1
        for r in range(4):
            A(f"v_and_b32_dpp v{dst+r}, v{vPP}, v{vMask+r} row_newbcast:{4*t+Gi} {DPPM}")
    def pv(u):
        n = 16 + u
        src = vA0 if (u & 1) == 0 else vA1
        A(f"v_mfma_f32_16x16x32_bf16 v[{vO}:{vO+3}], v[{src}:{src+3}], a[{4*n}:{4*n+3}], v[{vO}:{vO+3}]")
    def book():
        A(f"s_add_u32 s{sT+1}, s{sI}, 1"); A(f"s_lshl_b32 s{sT}, s{sT+1}, 3"); A(f"s_add_u32 s{sT}, s{sT}, s{sW4}")
        chunk_off(sNxt, sT, sT+1)
        A(f"s_cmp_lt_u32 s{sT}, 128")
        A("s_cbranch_scc0 L_final")
        for G_ in range(1, 4): A(f"s_add_u32 s{sNxt+G_}, s{sNxt}, {gstride*G_}")
        if DB > D:
            A(f"s_cmp_ge_u32 s{sI}, {cfg.burst_from}"); A("s_cselect_b64 vcc, -1, 0")
    def soft(part):
        if part == 0:
            A("s_nop 7")
            for d in range(4):
                def acc(Gi, r): return f"v{vAcc+4*Gi+r}"
                A(f"v_cndmask_b32 v{vT+4}, {acc(d,0)}, {acc(1^d,1)}, s[{sM1}:{sM1+1}]")
                A(f"v_cndmask_b32 v{vT+5}, {acc(2^d,2)}, {acc(3^d,3)}, s[{sM1}:{sM1+1}]")
                A(f"v_cndmask_b32 v{X+d}, v{vT+4}, v{vT+5}, s[{sM2}:{sM2+1}]")
            A("s_nop 1")
            A(f"v_add_f32_dpp v{X}, v{X+1}, v{X} quad_perm:[1,0,3,2] {DPPM}")
            A(f"v_add_f32_dpp v{X+2}, v{X+3}, v{X+2} quad_perm:[1,0,3,2] {DPPM}")
            A("s_nop 1")
            A(f"v_add_f32_dpp v{X}, v{X+2}, v{X} quad_perm:[2,3,0,1] {DPPM}")
            A(f"v_cvt_pk_bf16_f32 v{X}, 0, v{X}"); A(f"v_mul_f32 v{X}, {SCALE}, v{X}"); A(f"v_cvt_pk_bf16_f32 v{X}, 0, v{X}")
            A(f"v_mov_b32 v{X+1}, v{X}")
        elif part == 1:
            wave_reduce(g, X+1, "v_max_f32")
        elif part == 2:
            A("s_nop 0")
            A(f"v_readlane_b32 s{sT}, v{X+1}, 63"); A("s_nop 1")
            A(f"v_max_f32 v{X+1}, s{sT}, v{vM}")
            A(f"v_sub_f32 v{X+2}, v{vM}, v{X+1}"); A(f"v_sub_f32 v{X}, v{X}, v{X+1}")
            A(f"v_mul_f32 v{X+2}, {LOG2E}, v{X+2}"); A(f"v_mul_f32 v{X}, {LOG2E}, v{X}")
            A(f"v_exp_f32 v{X+2}, v{X+2}"); A(f"v_exp_f32 v{X}, v{X}")
            A(f"v_mov_b32 v{vM}, v{X+1}")
        else:
            A(f"v_fma_f32 v{vL}, v{vL}, v{X+2}, v{X}")
            A(f"v_cvt_pk_bf16_f32 v{vPP}, v{X}, v{X}")
            for r in range(4): A(f"v_mul_f32 v{vO+r}, v{vO+r}, v{X+2}")
            buildA(0)
    def comp(j):
        if j == 0:
            for n in range(5): yield ('qk', n)
        elif j <= 11: yield ('qk', j + 4)
        elif j <= 15: yield ('soft', j - 12)
        else: yield ('pv', j - 16)
    def emit_comp(kind, x):
        if 'nocomp' in cfg.diag: return
        if kind == 'qk': qk(x)
        elif kind == 'soft': soft(x)
        else:
            if x < 15: buildA(x + 1)
            else: A("s_nop 1")
            pv(x)
    class Trk:
        def __init__(t, H, C): t.H = list(H); t.C = C
        def wait_to(t, newC, emit):
            if newC > t.C:
                w = len(t.H) - newC
                if emit: A(f"s_waitcnt vmcnt({w})")
                t.C = newC
    def iteration(trk, emit):
        for j in range(32):
            pos = j + LA
            req = [x for (k, x) in comp(j) if k == 'qk'] + [16 + x for (k, x) in comp(j) if k == 'pv']
            newC = trk.C
            if req:
                idx = max(i for i, o in enumerate(trk.H) if o == ('L', max(req)))
                newC = max(newC, idx + 1)
            newC = max(newC, len(trk.H) - (DB - 1))
            if DB > D and emit:
                wn = D - 1
                if len(trk.H) - wn > newC and not (j == 0):
                    A(f"s_cbranch_vccnz L_bs{j}")
                    A(f"s_waitcnt vmcnt({wn})")
                    g.lab(f"L_bs{j}")
                elif len(trk.H) - wn > newC:
                    pass
            trk.wait_to(newC, emit)
            if emit and cfg.stamps == 'it0' and f'j{j}' in PROFILES['it0']:
                A(f"s_cmp_lg_u32 s{sI}, 0"); A(f"s_cbranch_scc1 L_st0_{j}"); g.stamp(f'j{j}'); g.lab(f"L_st0_{j}")
            if j == 0 and emit:
                book()
                if DB > D and len(trk.H) - (D - 1) > trk.C:
                    A(f"s_cbranch_vccnz L_bs0"); A(f"s_waitcnt vmcnt({D-1})"); g.lab("L_bs0")
            if emit: issue(pos & 31, pos >= 32)
            trk.H.append(('N', pos - 32) if pos >= 32 else ('L', pos))
            if emit:
                for (k, x) in comp(j): emit_comp(k, x)
        H2 = [(('L', o[1]) if o[0] == 'N' else (('X',) if o[0] == 'L' else o)) for o in trk.H]
        return Trk(H2, trk.C)
    def final_iteration(H0):
        trk = Trk(H0, 0)
        idx = max(i for i, o in enumerate(trk.H) if o == ('L', 4)); trk.C = idx + 1
        for p in range(LA, 32):
            issue(p, False); trk.H.append(('L', p))
        for j in range(32):
            req = [x for (k, x) in comp(j) if k == 'qk'] + [16 + x for (k, x) in comp(j) if k == 'pv']
            if req:
                idx = max(i for i, o in enumerate(trk.H) if o == ('L', max(req)))
                trk.wait_to(idx + 1, True)
            for (k, x) in comp(j): emit_comp(k, x)
    def endit():
        for G_ in range(4): A(f"s_mov_b32 s{sCur+G_}, s{sNxt+G_}")
        A(f"s_add_u32 s{sI}, s{sI}, 1")
        if 'iters' in cfg.diag:
            A("s_memrealtime s[82:83]"); A("s_waitcnt lgkmcnt(0)")
            A(f"s_lshl_b32 s{sT}, s3, 7"); A(f"s_lshl_b32 s{sT+1}, s{sI}, 2"); A(f"s_add_u32 s{sT}, s{sT}, s{sT+1}")
            A(f"v_mov_b32 v{vT+6}, s{sT}"); A(f"v_mov_b32 v{vT+7}, s82"); A(f"ds_write_b32 v{vT+6}, v{vT+7} offset:15000")
    entry = Trk([('L', p) for p in range(LA)], 0)
    tA = iteration(Trk(entry.H, entry.C), False)
    assert tA.H[-LA:] == entry.H, (tA.H[-LA:], entry.H)
    if DB > D: A("s_mov_b64 vcc, 0")
    g.lab("L_chunk")
    iteration(Trk(entry.H, entry.C), True)
    endit()
    A("s_branch L_chunk")
    g.lab("L_final")
    A("s_cmp_lg_u32 s3, 0"); A("s_cbranch_scc1 L_noclaim"); A("s_cmp_ge_u32 s2, 128"); A("s_cbranch_scc1 L_noclaim")
    A(f"s_mov_b64 s[66:67], s[{sTAG}:{sTAG+1}]")
    A(f"s_atomic_swap_x2 s[66:67], s[{sWS}:{sWS+1}], s{sCL} glc")
    g.lab("L_noclaim")
    final_iteration([('L', p) for p in range(LA)])
    A(f"s_add_u32 s{sI}, s{sI}, 1")
    g.stamp('s_end')
    A("s_cmp_lg_u32 s3, 0"); A("s_cbranch_scc1 L_norole")
    A("s_waitcnt lgkmcnt(0)")
    A(f"s_cmp_eq_u64 s[66:67], s[{sTAG}:{sTAG+1}]"); A("s_cselect_b32 s65, 255, s65")
    A(f"s_sub_u32 s{sT}, s2, {128 - NFFN}"); A("s_cmp_ge_u32 s2, 128"); A(f"s_cselect_b32 s65, s{sT}, s65")
    A(f"v_mov_b32 v{vT}, s65"); A(f"ds_write_b32 v{vZ}, v{vT} offset:{L_ROLE}")
    g.lab("L_norole")
    wave_reduce(g, vL, "v_add_f32")
    t = vT
    A(f"v_and_b32 v{t+4}, 15, v0"); A(f"v_lshlrev_b32 v{t+4}, 5, v{t+4}")
    A(f"v_lshrrev_b32 v{t+5}, 4, v0"); A(f"v_lshlrev_b32 v{t+5}, 4, v{t+5}"); A(f"v_add_u32 v{t+4}, v{t+4}, v{t+5}")
    A(f"s_lshl_b32 s{sT}, s3, 9"); A(f"v_add_u32 v{t+4}, s{sT}, v{t+4}")
    A(f"v_mov_b32 v{t+6}, v{vM}"); A(f"v_mov_b32 v{t+7}, v{vL}")
    A(f"s_lshl_b32 s{sT}, s3, 3"); A(f"v_mov_b32 v{t+5}, s{sT}")
    A("s_mov_b32 exec_hi, 0")
    A(f"ds_write_b128 v{t+4}, v[{vO}:{vO+3}] offset:{L_PART}")
    A("s_mov_b32 exec_lo, 0"); A("s_mov_b32 exec_hi, 0x80000000")
    A(f"ds_write_b64 v{t+5}, v[{t+6}:{t+7}] offset:{L_ML}")
    A("s_mov_b64 exec, -1")
    A("s_waitcnt lgkmcnt(0)")
    A("s_barrier")
    g.stamp('s_bar2')
    if 'iters' in cfg.diag:
        A(f"s_lshl_b32 s{sT}, s3, 7"); A(f"v_lshlrev_b32 v{vT}, 2, v0"); A(f"v_add_u32 v{vT+1}, s{sT}, v{vT}")
        A(f"ds_read_b32 v{vT+2}, v{vT+1} offset:15000"); A("s_waitcnt lgkmcnt(0)")
        A(f"s_lshl_b32 s{sT}, s2, 2"); A(f"s_add_u32 s{sT}, s{sT}, s3"); A(f"s_lshl_b32 s{sT}, s{sT}, 7"); A(f"s_add_u32 s{sT}, s{sT}, {WS_IT}")
        A("s_mov_b32 exec_hi, 0")
        A(f"buffer_store_dword v{vT+2}, v{vT}, s[{sTS}:{sTS+3}], s{sT} offen")
        A("s_mov_b64 exec, -1")
    if 'hs2' in cfg.diag:
        A("s_or_b32 s79, s2, s3"); A("s_cmp_lg_u32 s79, 0"); A("s_cbranch_scc1 L_hs2s")
        hs2_store(g, [(84, 0), (86, 1), (88, 2), (90, 3)], 's')
        g.lab("L_hs2s")
    elif cfg.stamps:
        A(f"s_mov_b32 s75, s{sI}"); A("s_mov_b32 s66, 0")
        dump_stamps(g, 9 if cfg.stamps == 'it0' else 5, False)
    A("s_endpgm")

def tail(g, cfg):
    A = g.A; SC = cfg.SC
    g.lab("L_tail")
    if cfg.tailprio: A(f"s_setprio {cfg.tailprio}")
    A("s_sub_u32 s3, s3, 4")
    sXS, sWQS, sWOS, sWSS, sOS = 32, 36, 40, 44, 52
    sGS, sUS, sDNS = 56, 36, 40
    sODD, sGEN, sR2M = 48, 50, 50
    sT = 68; sJ = 64
    vZ = 9
    A(f"s_lshl_b32 s{sJ}, s29, 1"); A(f"s_add_u32 s{sJ}, s{sJ}, s30")
    A(f"v_mov_b32 v{vZ}, 0")
    def wo_dma(vo):
        A(f"s_lshl_b32 s{sT}, s28, 17")
        srd(g, sWOS, sWO, 128*1024, sT)
        A(f"v_lshrrev_b32 v{vo}, 3, v0"); A(f"v_lshlrev_b32 v{vo}, 10, v{vo}"); A("v_and_b32 v8, 7, v0"); A("v_lshlrev_b32 v8, 4, v8")
        A(f"v_add_u32 v{vo}, v{vo}, v8")
        A(f"s_lshl_b32 s{sT}, s{sJ}, 7"); A(f"s_lshl_b32 s{sT+1}, s3, 15"); A(f"s_add_u32 s{sT}, s{sT}, s{sT+1}")
        A(f"s_lshl_b32 s{sT+2}, s3, 12"); A(f"s_add_u32 s{sT+2}, s{sT+2}, {L_WO}")
        for n in range(4):
            A(f"s_add_u32 m0, s{sT+2}, {n*1024}")
            A(f"s_add_u32 s{sT+3}, s{sT}, {n*8*1024}")
            A(f"buffer_load_dwordx4 v{vo}, s[{sWOS}:{sWOS+3}], s{sT+3} offen {cfg.wflags} lds")
    def ptouch():
        A("s_cmp_lg_u32 s3, 0"); A("s_cbranch_scc1 L_ptd")
        for base in [sOUT, sWG, sWU, sWD]:
            A(f"s_load_dword s67, s[{base}:{base+1}], 0")
        g.lab("L_ptd")
    def wo_tr():
        for T in range(4):
            fr = 96 + 4*T
            A(f"ds_read_b64_tr_b16 a[{fr}:{fr+1}], v13 offset:{T*32*128}")
            A(f"ds_read_b64_tr_b16 a[{fr+2}:{fr+3}], v13 offset:{T*32*128 + 4*128}")
    def mk_tags():
        A(f"s_add_u32 s{sT}, s{sGEN}, {hex(K1)}"); A(f"s_add_u32 s{sT+1}, s{sGEN}, {hex(K2)}")
        A(f"v_mov_b32 v{vTAG}, s{sT}"); A(f"v_mov_b32 v{vTAG+1}, s{sT+1}")

    if cfg.q == 'coop':
        A("v_lshlrev_b32 v2, 4, v0")
        A("v_lshrrev_b32 v3, 2, v0"); A("v_lshlrev_b32 v3, 13, v3"); A("v_and_b32 v8, 3, v0"); A("v_lshlrev_b32 v8, 4, v8")
        A("v_add_u32 v3, v3, v8")
        A("v_lshrrev_b32 v6, 4, v0"); A("v_lshlrev_b32 v6, 10, v6"); A("v_and_b32 v7, 15, v0")
        A("v_lshlrev_b32 v4, 6, v7"); A("v_add_u32 v4, v4, v6")
        A("v_lshlrev_b32 v5, 3, v7"); A("v_add_u32 v5, v5, v6"); A(f"s_lshl_b32 s{sT}, s{sJ}, 7"); A(f"v_add_u32 v5, s{sT}, v5")
        A(f"s_lshl_b32 s70, s{sJ}, 19"); A(f"s_lshl_b32 s71, s28, 8"); A(f"s_add_u32 s70, s70, s71")
        A(f"s_lshl_b32 s71, s3, 6"); A(f"s_add_u32 s70, s70, s71")
        A(f"s_lshl_b32 s72, s3, 12"); A(f"s_add_u32 s72, s72, {L_WQ}")
        A("s_waitcnt lgkmcnt(0)")
        g.stamp('t_args')
        A(f"s_load_dword s{sGEN}, s[{sWS}:{sWS+1}], {hex(WS_GEN)}")
        srd(g, sXS, sX, 4096)
        for m in range(4): A(f"buffer_load_dwordx4 v[{64+4*m}:{64+4*m+3}], v4, s[{sXS}:{sXS+3}], 0 offen offset:{16*m}")
        A(f"buffer_load_dwordx2 v[80:81], v5, s[{sXS}:{sXS+3}], 0 offen")
        srd(g, sWQS, sWQ, 512*8192)
        for n in range(4):
            A(f"s_add_u32 m0, s72, {n*1024}")
            A(f"s_add_u32 s73, s70, {n*16*8192}")
            A(f"buffer_load_dwordx4 v3, s[{sWQS}:{sWQS+3}], s73 offen {cfg.wqflags} lds")
        A("v_mov_b32 v13, s72")
        nlate = 0
        srd(g, sWSS, sWS, WS_SIZE)
        A("v_lshrrev_b32 v11, 4, v0"); A("v_lshlrev_b32 v11, 3, v11"); A("v_lshrrev_b32 v12, 2, v0"); A("v_and_b32 v12, 3, v12")
        A("v_add_u32 v11, v11, v12"); A("v_and_b32 v12, 3, v0"); A("v_lshlrev_b32 v12, 3, v12")
        A("v_lshlrev_b32 v10, 6, v11"); A("v_add_u32 v13, v13, v10"); A("v_add_u32 v13, v13, v12")
        A(f"s_mul_i32 s74, s3, {4*XN_ROW}")
        A("v_lshrrev_b32 v15, 4, v0"); A(f"v_mul_u32_u24 v15, {XN_ROW}, v15"); A("v_lshlrev_b32 v7, 3, v7"); A("v_add_u32 v15, v15, v7")
        A("v_add_u32 v15, s74, v15")
        A("v_and_b32 v14, 3, v0"); A(f"v_mul_u32_u24 v14, {XN_ROW}, v14"); A("v_lshrrev_b32 v7, 4, v0"); A("v_lshlrev_b32 v7, 4, v7")
        A("v_add_u32 v14, v14, v7"); A("v_add_u32 v14, s74, v14")
        A(f"s_waitcnt vmcnt({4 + nlate})")
        g.stamp('t_x')
        for r in range(16):
            A(f"v_lshlrev_b32 v{24+2*r}, 16, v{64+r}"); A(f"v_and_b32 v{25+2*r}, 0xffff0000, v{64+r}")
        A("v_pk_add_f32 v[56:57], v[24:25], v[26:27]"); A("v_pk_add_f32 v[58:59], v[28:29], v[30:31]")
        for r in range(4, 16, 2):
            A(f"v_pk_add_f32 v[56:57], v[56:57], v[{24+2*r}:{25+2*r}]"); A(f"v_pk_add_f32 v[58:59], v[58:59], v[{26+2*r}:{27+2*r}]")
        A("v_pk_add_f32 v[56:57], v[56:57], v[58:59]")
        A("v_add_f32 v56, v56, v57")
        for ctl in ["row_ror:8", "row_ror:4", "row_ror:2", "row_ror:1"]:
            A("s_nop 1"); A(f"v_add_f32_dpp v56, v56, v56 {ctl} {DPPM}")
        A(f"v_mul_f32 v56, {INV512}, v56"); A("v_mov_b32 v57, v56")
        A("v_pk_add_f32 v[60:61], v[24:25], v[56:57] neg_lo:[0,1] neg_hi:[0,1]")
        A("v_pk_mul_f32 v[58:59], v[60:61], v[60:61]")
        for r in range(1, 16):
            A(f"v_pk_add_f32 v[60:61], v[{24+2*r}:{25+2*r}], v[56:57] neg_lo:[0,1] neg_hi:[0,1]")
            A(f"v_pk_fma_f32 v[58:59], v[60:61], v[60:61], v[58:59]")
        A("v_add_f32 v58, v58, v59")
        A("v_cvt_pk_bf16_f32 v56, 0, v56")
        A("v_lshlrev_b32 v24, 16, v80"); A("v_and_b32 v25, 0xffff0000, v80"); A("v_lshlrev_b32 v26, 16, v81"); A("v_and_b32 v27, 0xffff0000, v81")
        fillv = [f"v_sub_f32 v{24+e}, v{24+e}, v56" for e in range(4)] + [f"v_cvt_pk_bf16_f32 v{24+e}, 0, v{24+e}" for e in range(4)]
        for n, ctl in enumerate(["row_ror:8", "row_ror:4", "row_ror:2", "row_ror:1"]):
            A(f"v_add_f32_dpp v58, v58, v58 {ctl} {DPPM}"); A(fillv[2*n]); A(fillv[2*n+1])
        A(f"v_mul_f32 v58, {INV512}, v58"); A("v_cvt_pk_bf16_f32 v58, 0, v58"); A(f"v_add_f32 v58, {EPS}, v58"); A("v_cvt_pk_bf16_f32 v58, 0, v58")
        A("v_sqrt_f32 v58, v58"); A("s_nop 0"); A("v_cvt_pk_bf16_f32 v58, 0, v58"); A("v_rcp_f32 v59, v58"); A("s_nop 0")
        for e in range(4):
            A(f"v_mul_f32 v60, v{24+e}, v59"); A(f"v_fma_f32 v{24+e}, -v60, v58, v{24+e}"); A(f"v_fma_f32 v{24+e}, v{24+e}, v59, v60")
        A("v_cvt_pk_bf16_f32 v24, v24, v25"); A("v_cvt_pk_bf16_f32 v25, v26, v27")
        A(f"ds_write_b64 v15, v[24:25] offset:{L_XN}")
        g.stamp('t_ln')
        A(f"s_waitcnt vmcnt({nlate}) lgkmcnt(0)")
        g.stamp('t_bar0')
        for T in range(2): A(f"ds_read_b128 v[{24+4*T}:{24+4*T+3}], v14 offset:{L_XN + 64*T}")
        for T in range(2):
            for ct in range(2):
                fr = 40 + (T*2+ct)*4
                A(f"ds_read_b64_tr_b16 v[{fr}:{fr+1}], v13 offset:{T*32*64 + ct*32}")
                A(f"ds_read_b64_tr_b16 v[{fr+2}:{fr+3}], v13 offset:{T*32*64 + ct*32 + 4*64}")
        mk_tags()
        for b in range(4):
            A(f"v_mov_b32 v{64+4*b+2}, v{vTAG}"); A(f"v_mov_b32 v{64+4*b+3}, v{vTAG+1}")
        A(f"s_lshl_b32 s70, s28, 15"); A(f"s_lshl_b32 s71, s{sJ}, 10"); A("s_add_u32 s70, s70, s71")
        A(f"s_lshl_b32 s71, s3, 8"); A("s_add_u32 s70, s70, s71"); A(f"s_add_u32 s70, s70, {WS_QP}")
        A("s_waitcnt lgkmcnt(0)")
        for T in range(2):
            for ct in range(2):
                fr = 40 + (T*2+ct)*4
                cin = "0" if T == 0 else f"v[{56+4*ct}:{56+4*ct+3}]"
                A(f"v_mfma_f32_16x16x32_bf16 v[{56+4*ct}:{56+4*ct+3}], v[{24+4*T}:{24+4*T+3}], v[{fr}:{fr+3}], {cin}")
        A(f"s_lshl_b32 s72, s28, 15"); A(f"s_lshl_b32 s73, s29, 13"); A("s_add_u32 s72, s72, s73")
        A(f"s_lshl_b32 s73, s3, 11"); A("s_add_u32 s72, s72, s73"); A(f"s_add_u32 s72, s72, {WS_QP}")
        A("s_nop 4")
        for b in range(4):
            A(f"v_mov_b32 v{64+4*b}, v{56+b}"); A(f"v_mov_b32 v{64+4*b+1}, v{60+b}")
        A("s_mov_b64 exec, 0xffff")
        for b in range(4):
            if b: A("s_add_u32 s70, s70, 8192")
            A(f"buffer_store_dwordx4 v[{64+4*b}:{64+4*b+3}], v2, s[{sWSS}:{sWSS+3}], s70 offen {SC}")
        A("s_mov_b64 exec, -1")
        g.stamp('t_pub')
        A("v_lshrrev_b32 v8, 4, v0"); A("v_lshlrev_b32 v8, 7, v8"); A("v_and_b32 v7, 15, v0"); A("v_lshlrev_b32 v7, 2, v7")
        A("v_add_u32 v8, v8, v7"); A("s_lshl_b32 s73, s3, 9"); A("v_add_u32 v8, s73, v8"); A(f"v_add_u32 v8, {L_PART}, v8")
        if cfg.qwait: A("s_waitcnt vmcnt(0)")
        def q_loads():
            A(f"buffer_load_dwordx4 v[24:27], v2, s[{sWSS}:{sWSS+3}], s72 offen {SC}")
            A(f"buffer_load_dwordx4 v[28:31], v2, s[{sWSS}:{sWSS+3}], s72 offen offset:1024 {SC}")
        poll(g, "qpoll", q_loads, [24, 28])
        g.stamp('t_got')
        A("v_add_f32 v24, v24, v28"); A("v_add_f32 v25, v25, v29")
        A("ds_write2_b32 v8, v24, v25 offset1:16")
        A("s_waitcnt lgkmcnt(0)")
        A("s_barrier")
        g.stamp('t_bar1')
    else:
        rotS = 78
        if cfg.rot: A(f"s_lshl_b32 s{rotS}, s29, 2")
        else: A(f"s_mov_b32 s{rotS}, 0")
        A(f"v_add_u32 v2, s{rotS}, v0"); A("v_and_b32 v2, 15, v2"); A("v_and_b32 v8, 48, v0"); A("v_add_u32 v2, v2, v8")
        A("v_lshlrev_b32 v2, 4, v2")
        A("v_lshrrev_b32 v3, 4, v0"); A("v_lshlrev_b32 v3, 20, v3"); A("v_and_b32 v8, 15, v0"); A("v_lshlrev_b32 v8, 4, v8")
        A("v_add_u32 v3, v3, v8")
        A(f"s_lshl_b32 s{sT}, s3, 14"); A(f"s_lshl_b32 s{sT+1}, s28, 8"); A(f"s_add_u32 s{sT}, s{sT}, s{sT+1}")
        A(f"s_lshl_b32 s{sT+1}, s29, 10")
        A("s_waitcnt lgkmcnt(0)")
        g.stamp('t_args')
        A(f"s_load_dword s{sGEN}, s[{sWS}:{sWS+1}], {hex(WS_GEN)}")
        srd(g, sXS, sX, 1024, sT+1)
        A(f"buffer_load_dwordx4 v[4:7], v2, s[{sXS}:{sXS+3}], 0 offen")
        srd(g, sWSS, sWS, WS_SIZE)
        srd(g, sWQS, sWQ, 512*8192)
        for n in range(16):
            A(f"s_add_u32 s79, s{rotS}, {n}"); A("s_and_b32 s79, s79, 15"); A("s_lshl_b32 s79, s79, 16"); A(f"s_add_u32 s79, s79, s{sT}")
            for e in range(2):
                idx = 2*n + e
                if cfg.bar0 == idx: A("s_barrier")
                if e == 1: A("s_add_u32 s79, s79, 8192")
                A(f"buffer_load_dwordx4 a[{4*idx}:{4*idx+3}], v3, s[{sWQS}:{sWQS+3}], s79 offen {cfg.wqflags}")
        if cfg.bar0 == 32: A("s_barrier")
        vMask = 16
        onehot_masks(g, vMask, 20)
        A(f"s_waitcnt vmcnt(32)")
        g.stamp('t_x')
        unpack8(g, 4, 24)
        layernorm8(g, 24, 32, sT)
        for w, (a0, a1) in enumerate([(26, 27), (28, 29), (30, 31)]):
            A(f"s_cmp_eq_u32 s3, {w+1}"); A(f"s_cselect_b64 s[72:73], -1, 0")
            A(f"v_cndmask_b32 v24, v24, v{a0}, s[72:73]"); A(f"v_cndmask_b32 v25, v25, v{a1}, s[72:73]")
        A("v_lshrrev_b32 v38, 16, v24"); A("v_or_b32 v36, v24, v38"); A("v_lshrrev_b32 v38, 16, v25"); A("v_or_b32 v37, v25, v38")
        g.stamp('t_ln')
        vA0, vA1, vQ = 44, 48, 40
        def buildAq(idx):
            n, e = idx >> 1, idx & 1
            dst = vA0 if (idx & 1) == 0 else vA1
            for r in range(4): A(f"v_and_b32_dpp v{dst+r}, v{36+e}, v{vMask+r} row_newbcast:{n} {DPPM}")
        A("s_nop 1")
        buildAq(0)
        for idx in range(32):
            if idx < 31: buildAq(idx + 1)
            if idx % 2 == 0 or idx == 31: A(f"s_waitcnt vmcnt({max(0, 30 - idx)})")
            if idx == 31: A("s_nop 1")
            src = vA0 if (idx & 1) == 0 else vA1
            cin = "0" if idx == 0 else f"v[{vQ}:{vQ+3}]"
            A(f"v_mfma_f32_16x16x32_bf16 v[{vQ}:{vQ+3}], v[{src}:{src+3}], a[{4*idx}:{4*idx+3}], {cin}")
        A("v_and_b32 v52, 15, v0"); A("v_lshlrev_b32 v52, 5, v52"); A("v_lshrrev_b32 v53, 4, v0"); A("v_lshlrev_b32 v53, 4, v53")
        A("v_add_u32 v52, v52, v53"); A(f"s_lshl_b32 s{sT}, s3, 9"); A(f"v_add_u32 v52, s{sT}, v52")
        A("s_nop 1")
        A("s_mov_b32 exec_hi, 0")
        A(f"ds_write_b128 v52, v[{vQ}:{vQ+3}] offset:{L_PART}")
        A("s_mov_b64 exec, -1")
        A("s_waitcnt lgkmcnt(0)")
        g.stamp('t_pub')
        A("s_barrier")
        g.stamp('t_bar1')
        mk_tags()

    wo_dma(3)
    if cfg.ptouch: ptouch()
    sU = 65
    A(f"s_lshl_b32 s{sU}, s28, 2"); A(f"s_add_u32 s{sU}, s{sU}, s29"); A(f"s_lshl_b32 s{sU}, s{sU}, 1"); A(f"s_add_u32 s{sU}, s{sU}, s30")
    srd(g, sXS, sX, 4096); srd(g, sOS, sOUT, 4096)
    A(f"s_cmp_lt_u32 s2, 128"); A("s_cbranch_scc1 L_nox"); A("s_cmp_lg_u32 s3, 0"); A("s_cbranch_scc1 L_nox")
    A("v_and_b32 v6, 3, v0"); A("v_lshlrev_b32 v4, 1, v6"); A("s_sub_u32 s73, s2, 128"); A("s_lshl_b32 s73, s73, 3")
    for r in range(4): A(f"buffer_load_ushort v{102+r}, v4, s[{sXS}:{sXS+3}], s73 offen offset:{1024*r}")
    A("s_waitcnt vmcnt(0)")
    for r in range(4): A(f"v_lshlrev_b32 v{102+r}, 16, v{102+r}")
    g.lab("L_nox")
    A("v_lshrrev_b32 v11, 4, v0"); A("v_lshlrev_b32 v11, 3, v11"); A("v_lshrrev_b32 v12, 2, v0"); A("v_and_b32 v12, 3, v12")
    A("v_add_u32 v11, v11, v12"); A("v_and_b32 v12, 3, v0"); A("v_lshlrev_b32 v12, 3, v12")
    A(f"s_lshl_b32 s{sT+2}, s3, 5"); A(f"s_add_u32 s{sT+2}, s{sT+2}, {L_WO}")
    A("v_lshlrev_b32 v13, 7, v11"); A("v_add_u32 v13, v13, v12"); A(f"v_add_u32 v13, s{sT+2}, v13")
    A("s_waitcnt vmcnt(0)")
    A("v_lshlrev_b32 v2, 3, v0")
    A(f"s_lshl_b32 s71, s{sU}, 10"); A(f"s_add_u32 s71, s71, {WS_OP}")
    A("s_lshl_b32 s68, s28, 2"); A("s_add_u32 s68, s68, s3")
    A(f"s_lshl_b32 s73, s68, 11"); A(f"s_add_u32 s73, s73, {WS_OP}")
    A("v_and_b32 v14, 3, v0"); A(f"v_mul_u32_u24 v14, {OA_ROW}, v14"); A("v_lshrrev_b32 v15, 4, v0"); A("v_lshlrev_b32 v15, 4, v15")
    A("v_add_u32 v14, v14, v15")
    A("v_lshlrev_b32 v15, 2, v0"); A(f"s_mul_i32 s69, s3, {OA_ROW}"); A("v_add_u32 v15, s69, v15")
    A("s_lshl_b32 s69, s28, 13"); A(f"s_lshl_b32 s76, s{sJ}, 10"); A("s_add_u32 s69, s69, s76"); A("s_lshl_b32 s76, s3, 8"); A("s_add_u32 s69, s69, s76")
    A("v_lshlrev_b32 v4, 4, v0")
    A(f"s_mov_b32 s{sODD}, 0xaaaaaaaa"); A(f"s_mov_b32 s{sODD+1}, 0xaaaaaaaa")
    A(f"v_mov_b32 v55, v{vTAG}")
    A(f"v_mov_b32 v59, v{vTAG}")
    A(f"s_mov_b32 s{SEL_P}, 0x07060503"); A(f"s_mov_b32 s{SEL_P+1}, 0x07060502"); A(f"s_mov_b32 s{SEL_P+2}, 0x07060501")
    A(f"s_mov_b32 s{SEL_U}, 0x04000c0c"); A(f"s_mov_b32 s{SEL_U+1}, 0x0706000c")
    A("s_waitcnt lgkmcnt(0)")
    g.stamp('t_pf')
    A("s_barrier")
    g.stamp('t_bar2')
    A(f"ds_read_b32 v16, v{vZ} offset:{L_ROLE}")
    wo_tr()
    A("s_cmp_lg_u32 s3, s29"); A("s_cbranch_scc1 L_noop")
    for w in range(4): A(f"ds_read_b64 v[{24+2*w}:{25+2*w}], v2 offset:{L_PART + 512*w}")
    A(f"ds_read_b128 v[40:43], v{vZ} offset:{L_ML}"); A(f"ds_read_b128 v[44:47], v{vZ} offset:{L_ML+16}")
    A("s_waitcnt lgkmcnt(0)")
    A("v_max_f32 v48, v40, v42"); A("v_max3_f32 v48, v48, v44, v46")
    for r, mr in enumerate([40, 42, 44, 46]): A(f"v_sub_f32 v{32+r}, v{mr}, v48")
    for r in range(4): A(f"v_mul_f32 v{32+r}, {LOG2E}, v{32+r}")
    for r in range(4): A(f"v_exp_f32 v{32+r}, v{32+r}")
    A("s_nop 0")
    A("v_mul_f32 v49, v32, v41"); A("v_mul_f32 v52, v32, v24"); A("v_mul_f32 v53, v32, v25")
    for w, lr in [(1, 43), (2, 45), (3, 47)]:
        A(f"v_fmac_f32 v49, v{32+w}, v{lr}"); A(f"v_fmac_f32 v52, v{32+w}, v{24+2*w}"); A(f"v_fmac_f32 v53, v{32+w}, v{25+2*w}")
    A(f"v_cndmask_b32 v54, v48, v49, s[{sODD}:{sODD+1}]")
    A(f"buffer_store_dwordx4 v[52:55], v4, s[{sWSS}:{sWSS+3}], s71 offen {SC}")
    g.lab("L_noop")
    g.stamp('t_op')
    A("s_waitcnt lgkmcnt(0)")
    A("v_readfirstlane_b32 s66, v16")
    A(f"s_cmp_ge_u32 s66, {NFFN}"); A("s_cbranch_scc1 L_nodma")
    srd(g, sGS, sWG, 512*2752); srd(g, sUS, sWU, 512*2752); srd(g, sDNS, sWD, 1376*1024)
    A("v_lshrrev_b32 v3, 2, v0"); A("v_mul_u32_u24 v3, 2752, v3"); A("v_and_b32 v8, 3, v0"); A("v_lshlrev_b32 v8, 4, v8")
    A("v_add_u32 v3, v3, v8")
    A(f"s_mul_i32 s80, s3, {8*16*2752}"); A("s_lshl_b32 s81, s66, 6"); A("s_add_u32 s80, s80, s81")
    A("s_lshl_b32 s81, s3, 13"); A(f"s_add_u32 s82, s81, {L_G}")
    for k in range(8):
        A(f"s_add_u32 m0, s82, {k*1024}"); A(f"s_add_u32 s83, s80, {k*16*2752}")
        A(f"buffer_load_dwordx4 v3, s[{sGS}:{sGS+3}], s83 offen {cfg.wflags} lds")
        A(f"s_add_u32 m0, s82, {k*1024 + 32768}"); A("s_nop 0")
        A(f"buffer_load_dwordx4 v3, s[{sUS}:{sUS+3}], s83 offen {cfg.wflags} lds")
    if not cfg.dnlate: down_dma(g, cfg, sDNS)
    g.lab("L_nodma")
    def o_loads():
        A(f"buffer_load_dwordx4 v[24:27], v4, s[{sWSS}:{sWSS+3}], s73 offen {SC}")
        A(f"buffer_load_dwordx4 v[28:31], v4, s[{sWSS}:{sWSS+3}], s73 offen offset:1024 {SC}")
    poll(g, "opoll", o_loads, [24, 28], w32=True)
    g.stamp('t_o')
    A(f"v_mov_b32_dpp v32, v26 quad_perm:[0,0,2,2] {DPPM}"); A(f"v_mov_b32_dpp v33, v26 quad_perm:[1,1,3,3] {DPPM}")
    A(f"v_mov_b32_dpp v34, v30 quad_perm:[0,0,2,2] {DPPM}"); A(f"v_mov_b32_dpp v35, v30 quad_perm:[1,1,3,3] {DPPM}")
    A("v_max_f32 v40, v32, v34"); A("v_sub_f32 v41, v32, v40"); A("v_sub_f32 v42, v34, v40")
    A(f"v_mul_f32 v41, {LOG2E}, v41"); A(f"v_mul_f32 v42, {LOG2E}, v42")
    A("v_exp_f32 v41, v41"); A("v_exp_f32 v42, v42")
    A("s_nop 0")
    A("v_mul_f32 v43, v41, v33"); A("v_fmac_f32 v43, v42, v35"); A("v_rcp_f32 v43, v43"); A("s_nop 0")
    A("v_mul_f32 v41, v41, v43"); A("v_mul_f32 v42, v42, v43")
    A("v_mul_f32 v44, v41, v24"); A("v_mul_f32 v45, v41, v25"); A("v_fmac_f32 v44, v42, v28"); A("v_fmac_f32 v45, v42, v29")
    A("v_cvt_pk_bf16_f32 v44, v44, v45")
    A(f"ds_write_b32 v15, v44 offset:{L_OA}")
    A("s_waitcnt lgkmcnt(0)")
    A("s_barrier")
    for T in range(4): A(f"ds_read_b128 v[{24+4*T}:{24+4*T+3}], v14 offset:{L_OA + 64*T}")
    for T in range(4):
        A(f"s_waitcnt lgkmcnt({3-T})")
        cin = "0" if T == 0 else "v[40:43]"
        A(f"v_mfma_f32_16x16x32_bf16 v[40:43], v[{24+4*T}:{24+4*T+3}], a[{96+4*T}:{96+4*T+3}], {cin}")
    A("s_mov_b64 exec, 0xffff")
    A("s_nop 7")
    pack4(g, 40, 56, SEL_P)
    A(f"buffer_store_dwordx4 v[56:59], v4, s[{sWSS}:{sWSS+3}], s69 offen {SC}")
    A("s_mov_b64 exec, -1")
    g.stamp('t_y')
    tail_rest(g, cfg, sWSS, sXS, sOS, sGS, sUS, sDNS, sR2M, vZ)

def down_dma(g, cfg, sDNS):
    A = g.A
    A("v_lshrrev_b32 v3, 4, v0"); A("v_lshlrev_b32 v3, 10, v3"); A("v_and_b32 v8, 15, v0"); A("v_lshlrev_b32 v8, 4, v8")
    A("v_add_u32 v3, v3, v8")
    A("s_lshl_b32 s80, s66, 15"); A("s_lshl_b32 s81, s3, 8"); A("s_add_u32 s80, s80, s81")
    A("s_lshl_b32 s81, s3, 13"); A(f"s_add_u32 s83, s81, {L_DN}")
    for k in range(8):
        A(f"s_add_u32 m0, s83, {k*1024}"); A(f"s_add_u32 s79, s80, {k*4096}")
        A(f"buffer_load_dwordx4 v3, s[{sDNS}:{sDNS+3}], s79 offen {cfg.wflags} lds")

SEL_P = 61; SEL_U = 82
def sum_units(g, units, dst, tmp):
    A = g.A
    for u in units: unpack4(g, u, tmp, SEL_U)
    for r in range(4): A(f"v_add_f32 v{dst+r}, v{units[0]+r}, v{units[1]+r}")
    for u in units[2:]:
        for r in range(4): A(f"v_add_f32 v{dst+r}, v{dst+r}, v{u+r}")

def unpack_units(g, units, dst, tmp):
    A = g.A
    for n, u in enumerate(units):
        d = dst if n == 0 else tmp
        A(f"v_lshlrev_b32 v{d}, 16, v{u}"); A(f"v_and_b32 v{d+1}, 0xffff0000, v{u}")
        A(f"v_lshlrev_b32 v{d+2}, 16, v{u+1}"); A(f"v_and_b32 v{d+3}, 0xffff0000, v{u+1}")
        if n:
            for r in range(4): A(f"v_add_f32 v{dst+r}, v{dst+r}, v{tmp+r}")

def tail_rest(g, cfg, sWSS, sXS, sOS, sGS, sUS, sDNS, sR2M, vZ):
    A = g.A; SC = cfg.SC
    A(f"s_cmp_lt_u32 s66, {NFFN}"); A("s_cbranch_scc1 L_ffn")
    A(f"s_cmp_ge_u32 s66, {NFFN + 128}"); A("s_cbranch_scc1 L_fin")
    A("s_cmp_lg_u32 s3, 0"); A("s_cbranch_scc1 L_fin")
    sTau = 68
    A(f"s_sub_u32 s{sTau}, s66, {NFFN}")
    A("v_lshrrev_b32 v5, 2, v0"); A("v_and_b32 v6, 3, v0")
    A("v_lshlrev_b32 v2, 13, v5"); A("v_lshlrev_b32 v3, 4, v6"); A("v_add_u32 v2, v2, v3")
    A(f"s_lshl_b32 s71, s{sTau}, 6"); A(f"s_add_u32 s72, s71, {16*8192}")
    A(f"s_lshl_b32 s80, s{sTau}, 6"); A(f"s_add_u32 s80, s80, {WS_HM}")
    A(f"v_mov_b32 v10, v{vTAG}"); A(f"v_mov_b32 v11, v{vTAG+1}")
    def y_loads():
        A(f"buffer_load_dwordx4 v[16:19], v2, s[{sWSS}:{sWSS+3}], s71 offen {SC}")
        A(f"buffer_load_dwordx4 v[20:23], v2, s[{sWSS}:{sWSS+3}], s72 offen {SC}")
    poll(g, "r1poll", y_loads, [16, 20], w32=True)
    g.stamp('t_poll1')
    sum_units(g, [16, 20], 48, 52)
    reduce_a(g, 48, 52)
    for r in range(4): A(f"v_cvt_pk_bf16_f32 v{48+r}, 0, v{48+r}")
    for r in range(4): A(f"v_add_f32 v{48+r}, v{48+r}, v{102+r}")
    A("v_cvt_pk_bf16_f32 v8, v48, v49"); A("v_cvt_pk_bf16_f32 v9, v50, v51")
    A(f"buffer_store_dwordx4 v[8:11], v2, s[{sWSS}:{sWSS+3}], s80 offen {SC}")
    g.stamp('t_mid')
    A(f"v_mov_b32 v7, {32*8192}"); A(f"v_cmp_gt_u32 s[{sR2M}:{sR2M+1}], {NFFN-32}, v5"); A("s_nop 1")
    A(f"v_cndmask_b32 v7, 0, v7, s[{sR2M}:{sR2M+1}]"); A("v_add_u32 v7, v7, v2")
    A(f"s_lshl_b32 s71, s{sTau}, 6"); A(f"s_add_u32 s71, s71, {WS_P2}")
    A(f"s_add_u32 s72, s71, {16*8192}")
    A("v_lshlrev_b32 v56, 16, v8"); A("v_and_b32 v57, 0xffff0000, v8"); A("v_lshlrev_b32 v58, 16, v9"); A("v_and_b32 v59, 0xffff0000, v9")
    A("v_lshlrev_b32 v4, 1, v6"); A(f"s_lshl_b32 s74, s{sTau}, 3")
    def p_loads():
        A(f"buffer_load_dwordx4 v[16:19], v2, s[{sWSS}:{sWSS+3}], s71 offen {SC}")
        A(f"buffer_load_dwordx4 v[20:23], v2, s[{sWSS}:{sWSS+3}], s72 offen {SC}")
        A(f"buffer_load_dwordx4 v[24:27], v7, s[{sWSS}:{sWSS+3}], s71 offen {SC}")
    poll(g, "r2poll", p_loads, [16, 20, 24], w32=True)
    for r in range(3): A(f"v_cndmask_b32 v{24+r}, 0, v{24+r}, s[{sR2M}:{sR2M+1}]")
    sum_units(g, [16, 20, 24], 48, 52)
    reduce_a(g, 48, 52)
    for r in range(4): A(f"v_cvt_pk_bf16_f32 v{48+r}, 0, v{48+r}")
    for r in range(4): A(f"v_add_f32 v{48+r}, v{48+r}, v{56+r}")
    for r in range(4): A(f"v_cvt_pk_bf16_f32 v{48+r}, 0, v{48+r}")
    A("s_mov_b64 exec, 15")
    for r in range(4): A(f"buffer_store_short_d16_hi v{48+r}, v4, s[{sOS}:{sOS+3}], s74 offen offset:{1024*r}")
    A(f"s_cmp_lg_u32 s{sTau}, 0"); A("s_cbranch_scc1 L_nogen")
    A(f"s_mov_b32 s71, {WS_GEN}"); A("s_mov_b64 exec, 1"); A("v_mov_b32 v4, 0")
    A(f"buffer_store_dword v{vTAG}, v4, s[{sWSS}:{sWSS+3}], s71 offen {SC}")
    g.lab("L_nogen")
    A("s_mov_b64 exec, -1")
    g.stamp('t_end')
    A("s_branch L_fin")

    g.lab("L_ffn")
    if cfg.dnlate: down_dma(g, cfg, sDNS)
    A("v_lshrrev_b32 v11, 4, v0"); A("v_lshlrev_b32 v11, 3, v11"); A("v_lshrrev_b32 v12, 2, v0"); A("v_and_b32 v12, 3, v12")
    A("v_add_u32 v11, v11, v12"); A("v_and_b32 v12, 3, v0"); A("v_lshlrev_b32 v12, 3, v12")
    A("s_lshl_b32 s69, s3, 13"); A(f"s_add_u32 s72, s69, {L_G}"); A(f"s_add_u32 s73, s69, {L_DN}")
    A("v_lshlrev_b32 v16, 6, v11"); A("v_add_u32 v16, v16, v12"); A("v_add_u32 v16, s72, v16")
    A("v_add_u32 v17, 0x8000, v16")
    A("v_lshlrev_b32 v18, 8, v11"); A("v_add_u32 v18, v18, v12"); A("v_add_u32 v18, s73, v18")
    A("v_lshlrev_b32 v2, 5, v0"); A("s_lshl_b32 s68, s3, 11"); A("s_and_b32 s69, s66, 15"); A("s_lshl_b32 s69, s69, 13")
    A("s_add_u32 s68, s68, s69"); A(f"s_add_u32 s68, s68, {WS_HM}")
    def h_loads():
        A(f"buffer_load_dwordx4 v[40:43], v2, s[{sWSS}:{sWSS+3}], s68 offen {SC}")
        A(f"buffer_load_dwordx4 v[44:47], v2, s[{sWSS}:{sWSS+3}], s68 offen offset:16 {SC}")
    def dn_frag(n):
        ct, hf = n >> 1, n & 1
        fr = 64 + 4*ct + 2*hf
        A(f"ds_read_b64_tr_b16 a[{fr}:{fr+1}], v18 offset:{ct*32 + hf*4*256}")
    def frags():
        A("v_lshlrev_b32 v3, 4, v0"); A(f"s_mul_i32 s69, s3, {HN_ROW}"); A("v_add_u32 v3, s69, v3")
        A("v_and_b32 v4, 3, v0"); A(f"v_mul_u32_u24 v4, {HN_ROW}, v4"); A("v_lshrrev_b32 v5, 4, v0"); A("v_lshlrev_b32 v5, 4, v5")
        A("v_add_u32 v4, v4, v5"); A("s_lshl_b32 s69, s3, 8"); A("v_add_u32 v4, s69, v4")
        A("v_lshlrev_b32 v6, 2, v0"); A("v_add_u32 v6, s69, v6")
        A("s_mov_b32 s78, 0x07060302"); A("s_mov_b32 s79, 0x05040100")
        for T in range(4):
            for tile in range(4):
                mat, ct = tile >> 1, tile & 1
                base = 16 if mat == 0 else 17
                fr = (T*4 + tile)*4; off = T*32*64 + ct*32
                A(f"ds_read_b64_tr_b16 a[{fr}:{fr+1}], v{base} offset:{off}")
                A(f"ds_read_b64_tr_b16 a[{fr+2}:{fr+3}], v{base} offset:{off + 4*64}")
            A("s_waitcnt lgkmcnt(0)")
        if not cfg.dnlate:
            for n in range(16):
                dn_frag(n)
                if n == 7: A("s_waitcnt lgkmcnt(0)")
    frags()
    def dn_all():
        A("s_waitcnt vmcnt(0)")
        for n in range(16):
            dn_frag(n)
            if n == 7: A("s_waitcnt lgkmcnt(4)")
    poll(g, "hpoll", h_loads, [40, 44], pre=dn_all if cfg.dnlate else None)
    g.stamp('t_poll1')
    A("v_perm_b32 v36, v44, v40, s79"); A("v_perm_b32 v37, v44, v40, s78"); A("v_perm_b32 v38, v45, v41, s79"); A("v_perm_b32 v39, v45, v41, s78")
    for b in range(4): A(f"ds_write_b32 v6, v{36+b} offset:{L_HN + b*HN_ROW}")
    A("s_waitcnt lgkmcnt(0)"); A("s_barrier")
    A(f"ds_read_b128 v[36:39], v3 offset:{L_HN}")
    A("s_mov_b32 s77, 0x07060302")
    A("s_waitcnt lgkmcnt(0)")
    unpack8(g, 36, 24)
    layernorm8(g, 24, 32, 69)
    for r in range(4): A(f"v_perm_b32 v{36+r}, v{24+2*r+1}, v{24+2*r}, s77")
    A(f"ds_write_b128 v3, v[36:39] offset:{L_HN}")
    A("s_waitcnt lgkmcnt(0)"); A("s_barrier")
    for T in range(4): A(f"ds_read_b128 v[{24+4*T}:{24+4*T+3}], v4 offset:{L_HN + 64*T}")
    acc = 64
    A("v_lshlrev_b32 v2, 4, v0"); A("s_lshl_b32 s68, s3, 10"); A("v_add_u32 v3, s68, v2")
    for T in range(4):
        A(f"s_waitcnt lgkmcnt({3-T})")
        for c in range(4):
            cin = "0" if T == 0 else f"v[{acc+4*c}:{acc+4*c+3}]"
            A(f"v_mfma_f32_16x16x32_bf16 v[{acc+4*c}:{acc+4*c+3}], v[{24+4*T}:{24+4*T+3}], a[{(T*4+c)*4}:{(T*4+c)*4+3}], {cin}")
    A("s_mov_b64 exec, 0xffff")
    A("s_nop 4")
    for c in range(4): A(f"ds_write_b128 v3, v[{acc+4*c}:{acc+4*c+3}] offset:{L_P + c*256}")
    A("s_mov_b64 exec, -1")
    A("s_waitcnt lgkmcnt(0)"); A("s_barrier")
    g.stamp('t_mid')
    for w in range(4): A(f"ds_read_b128 v[{24+4*w}:{24+4*w+3}], v2 offset:{L_P + w*1024}")
    A("v_lshrrev_b32 v4, 5, v0"); A(f"v_mul_u32_u24 v4, {2*ACT_ROW}, v4"); A("v_and_b32 v5, 31, v0"); A("v_lshlrev_b32 v5, 1, v5")
    A("v_add_u32 v4, v4, v5"); A(f"s_mul_i32 s68, s3, {4*ACT_ROW}"); A("v_add_u32 v4, s68, v4")
    A("v_and_b32 v5, 3, v0"); A(f"v_mul_u32_u24 v5, {ACT_ROW}, v5"); A("v_lshrrev_b32 v6, 4, v0"); A("v_lshlrev_b32 v6, 4, v6")
    A("v_add_u32 v5, v5, v6"); A("v_add_u32 v5, s68, v5")
    A("v_mov_b32 v40, 0x3d372713")
    A("s_waitcnt lgkmcnt(0)")
    for r in range(4):
        A(f"v_add_f32 v{24+r}, v{24+r}, v{28+r}"); A(f"v_add_f32 v{32+r}, v{32+r}, v{36+r}")
    for r in range(4): A(f"v_add_f32 v{24+r}, v{24+r}, v{32+r}")
    A("s_nop 1")
    A("v_permlane32_swap_b32 v24, v26"); A("v_permlane32_swap_b32 v25, v27")
    A("s_nop 1")
    for r in range(4): A(f"v_cvt_pk_bf16_f32 v{24+r}, 0, v{24+r}")
    def gelu_steps(gt, up, t):
        return [f"v_mul_f32 v{t}, v{gt}, v{gt}", f"v_mul_f32 v{t}, v{t}, v{gt}", f"v_fma_f32 v{t}, v{t}, v40, v{gt}",
                f"v_mul_f32 v{t}, 0xc0135761, v{t}", f"v_exp_f32 v{t}, v{t}", None, f"v_add_f32 v{t}, 1.0, v{t}",
                f"v_rcp_f32 v{t}, v{t}", None, f"v_mul_f32 v{t}, v{t}, v{gt}", f"v_cvt_pk_bf16_f32 v{t}, 0, v{t}",
                f"v_mul_f32 v{t}, v{t}, v{up}", f"v_cvt_pk_bf16_f32 v{t}, 0, v{t}"]
    for a, b in zip(gelu_steps(24, 26, 28), gelu_steps(25, 27, 32)):
        if a is None: A("s_nop 0")
        else: A(a); A(b)
    A(f"ds_write_b16_d16_hi v4, v28 offset:{L_ACT}"); A(f"ds_write_b16_d16_hi v4, v32 offset:{L_ACT + ACT_ROW}")
    A("s_lshl_b32 s68, s66, 13"); A("s_lshl_b32 s69, s3, 11"); A("s_add_u32 s68, s68, s69"); A(f"s_add_u32 s68, s68, {WS_P2}")
    A("s_waitcnt lgkmcnt(0)")
    A(f"ds_read_b128 v[24:27], v5 offset:{L_ACT}")
    A("s_waitcnt lgkmcnt(0)")
    for c in range(8):
        A(f"v_mfma_f32_16x16x32_bf16 v[{acc+4*c}:{acc+4*c+3}], v[24:27], a[{64+4*c}:{64+4*c+3}], 0")
    A("s_mov_b64 exec, 0xffff"); A("s_nop 3")
    for c in range(8):
        a = acc + 4*c
        pack4(g, a, a, SEL_P)
        A(f"v_mov_b32 v{a+3}, v{vTAG}")
        A(f"buffer_store_dwordx4 v[{a}:{a+3}], v2, s[{sWSS}:{sWSS+3}], s68 offen offset:{256*c} {SC}")
    A("s_mov_b64 exec, -1")
    g.stamp('t_end')
    g.lab("L_fin")
    if 'hs2' in cfg.diag:
        A("s_cmp_lg_u32 s3, 0"); A("s_cbranch_scc1 L_hs2x")
        A("s_cmp_lg_u32 s2, 0"); A("s_cbranch_scc1 L_hs2a")
        A("s_mov_b32 s79, 0"); hs2_store(g, [(90, 4), (94, 5), (66, 15)], 'a')
        g.lab("L_hs2a")
        A("s_cmp_lg_u32 s66, 0"); A("s_cbranch_scc1 L_hs2b")
        A("s_mov_b32 s79, 0"); hs2_store(g, [(96, 12), (98, 13), (100, 14)], 'b')
        g.lab("L_hs2b")
        A(f"s_sub_u32 s78, s66, {NFFN}"); A("s_cmp_ge_u32 s78, 4"); A("s_cbranch_scc1 L_hs2x")
        A("s_lshl_b32 s79, s78, 2"); hs2_store(g, [(100, 8)], 'c')
        A("s_cmp_lg_u32 s78, 0"); A("s_cbranch_scc1 L_hs2x")
        A("s_mov_b32 s79, 0"); hs2_store(g, [(96, 6), (98, 7)], 'd')
        g.lab("L_hs2x")
    elif cfg.stamps: dump_stamps(g, 9, True)
    A("s_endpgm")

if __name__ == "__main__":
    cfg = Cfg()
    import argparse
    ap = argparse.ArgumentParser()
    ap.add_argument("-o", default="k.s")
    ap.add_argument("--D", type=int, default=5); ap.add_argument("--LA", type=int, default=28)
    ap.add_argument("--pre", type=int, default=16); ap.add_argument("--D0", type=int, default=5)
    ap.add_argument("--stamps", default=None); ap.add_argument("--wflags", default="nt"); ap.add_argument("--ldflags", default="nt")
    ap.add_argument("--sc", default="sc0 sc1"); ap.add_argument("--tailprio", type=int, default=3)
    ap.add_argument("--diag", default=""); ap.add_argument("--bar0", type=int, default=24)
    ap.add_argument("--nocodepf", action="store_true"); ap.add_argument("--notouch", action="store_true"); ap.add_argument("--noptouch", action="store_true")
    ap.add_argument("--boost", type=int, default=0); ap.add_argument("--burst_from", type=int, default=14)
    ap.add_argument("--qwait", type=int, default=1)
    ap.add_argument("--dnlate", type=int, default=1)
    ap.add_argument("--touch_at", type=int, default=0)
    ap.add_argument("--hmap", type=int, default=0)
    ap.add_argument("--norot", action="store_true"); ap.add_argument("--wqflags", default="nt"); ap.add_argument("--q", default="coop")
    a = ap.parse_args()
    if 'hs2' in a.diag: a.stamps = 'main'
    cfg.D = a.D; cfg.LA = a.LA; cfg.F = a.LA; cfg.pre = a.pre; cfg.D0 = a.D0; cfg.stamps = a.stamps
    cfg.wflags = a.wflags; cfg.ldflags = a.ldflags; cfg.SC = a.sc; cfg.tailprio = a.tailprio; cfg.diag = a.diag; cfg.bar0 = a.bar0
    cfg.codepf = not a.nocodepf; cfg.touch = not a.notouch; cfg.ptouch = not a.noptouch
    cfg.boost = a.boost if a.boost else max(a.D, a.LA - 4); cfg.burst_from = a.burst_from
    cfg.rot = not a.norot; cfg.wqflags = a.wqflags; cfg.q = a.q; cfg.qwait = a.qwait; cfg.hmap = a.hmap; cfg.touch_at = a.touch_at; cfg.dnlate = a.dnlate
    open(a.o, "w").write(gen(cfg))
```

```python
import sys
KNAME = "sequential_preLN__gqa_block_cached__geglu_ffn__decode_kernel"

class Cfg:
    D = 5; LA = 28; F = 28; pre = 16; D0 = 5; bar0 = 24; rot = True; wqflags = 'nt'; codepf = True; D2 = 32
    boost = 24; burst_from = 14; touch = True; q = 'coop'; ptouch = True
    ldflags = "nt"; wflags = "nt"
    stamps = None
    SC = "sc0 sc1"
    spin_max = 1 << 18
    tailprio = 3
    diag = ''

WS_Y2   = 0
WS_OP   = 0x40000
WS_P2   = 0x80000
WS_HM   = 0xD8000
WS_CL   = 0xF8000
WS_TK   = 0xFA000
WS_FB   = 0xFE000
WS_GEN  = 0xFF000
WS_QP   = 0x100000
WS_FL   = 0x200000
WS_DBG  = 0x260000
WS_IT   = 0x280000
WS_SIZE = 0x2C0000
K1 = 0x9E3779B9; K2 = 0x7F4A7C15
NFFN = 43
L_XN   = 5248
XN_ROW = 144
L_QV   = 1024
L_PART = 2048
L_ML   = 4096
L_FLAG = L_ML + 32
L_PROG = L_ML + 36
L_MODE = L_ML + 40
L_ROLE = L_ML + 44
L_OA   = 4160
OA_ROW = 272
L_HN   = 5248
HN_ROW = 1040
L_P    = L_HN + 4*HN_ROW
L_ACT  = L_P + 4096
ACT_ROW = 80
L_WQ   = 16384
L_WO   = 32768
L_G    = 49152
L_U    = L_G + 32768
L_DN   = L_U + 32768
L_END  = L_DN + 32768
assert L_OA + 4*OA_ROW <= L_HN and L_ACT + 16*ACT_ROW <= L_WQ and L_HN % 16 == 0 and L_P % 16 == 0 and L_ACT % 16 == 0

SCALE = "0x3db504f3"; LOG2E = "0x3fb8aa3b"; EPS = "0x3727c5ac"; INV512 = "0x3b000000"
DPPM = "row_mask:0xf bank_mask:0xf"

PROFILES = {
  'main': {'start':0, 's_q':1, 's_end':2, 's_bar2':3,
           't_bar1':1, 't_op':2, 't_o':3, 't_bar2':4, 't_y':5, 't_poll1':6, 't_mid':7, 't_end':8},
  'it0':  {'start':0, 's_iss':1, 's_bar1':2, 's_q':3, 'j0':4, 'j5':5, 'j11':6, 'j16':7, 'j31':8,
           't_args':1, 't_x':2, 't_ln':3, 't_bar0':4, 't_pub':5, 't_got':6, 't_bar1':7, 't_pf':8},
  'clr':  {'start':0, 's_c0':1, 's_c1':2, 's_c2':3, 's_q':4},
  'pro':  {'start':0, 's_iss':1, 's_bar1':2, 's_q':3, 's_it0':4,
           't_args':1, 't_x':2, 't_ln':3, 't_bar0':4, 't_pub':5, 't_got':6, 't_bar1':7, 't_pf':8},
}

class G:
    def __init__(s, cfg): s.L = []; s.cfg = cfg
    def A(s, t): s.L.append("  " + t)
    def lab(s, n): s.L.append(n + ":")
    def stamp(s, name):
        p = s.cfg.stamps
        if p and name in PROFILES[p]:
            i = PROFILES[p][name]
            s.A(f"s_memrealtime s[{84+2*i}:{85+2*i}]")

def srd(g, d, base, size, off_sgpr=None):
    if off_sgpr is None:
        g.A(f"s_mov_b32 s{d}, s{base}"); g.A(f"s_mov_b32 s{d+1}, s{base+1}")
    else:
        g.A(f"s_add_u32 s{d}, s{base}, s{off_sgpr}"); g.A(f"s_addc_u32 s{d+1}, s{base+1}, 0")
    g.A(f"s_mov_b32 s{d+2}, {size}"); g.A(f"s_mov_b32 s{d+3}, 0x20000")

def wave_reduce(g, v, op):
    for ctl in ["row_ror:8", "row_ror:4", "row_ror:2", "row_ror:1"]:
        g.A("s_nop 1"); g.A(f"{op}_dpp v{v}, v{v}, v{v} {ctl} {DPPM}")
    g.A("s_nop 1"); g.A(f"{op}_dpp v{v}, v{v}, v{v} row_bcast:15 row_mask:0xa bank_mask:0xf")
    g.A("s_nop 1"); g.A(f"{op}_dpp v{v}, v{v}, v{v} row_bcast:31 row_mask:0xc bank_mask:0xf")

def layernorm8(g, x, t, s_tmp):
    A = g.A
    t0, t1, t2, t3 = t, t+1, t+2, t+3
    A(f"v_add_f32 v{t0}, v{x}, v{x+1}"); A(f"v_add_f32 v{t1}, v{x+2}, v{x+3}")
    A(f"v_add_f32 v{t2}, v{x+4}, v{x+5}"); A(f"v_add_f32 v{t3}, v{x+6}, v{x+7}")
    A(f"v_add_f32 v{t0}, v{t0}, v{t1}"); A(f"v_add_f32 v{t2}, v{t2}, v{t3}"); A(f"v_add_f32 v{t0}, v{t0}, v{t2}")
    wave_reduce(g, t0, "v_add_f32")
    A(f"v_mov_b32 v{t1}, {INV512}")
    A(f"v_readlane_b32 s{s_tmp}, v{t0}, 63")
    A("s_nop 1")
    A(f"v_mul_f32 v{t1}, s{s_tmp}, v{t1}")
    A(f"v_sub_f32 v{t2}, v{x}, v{t1}")
    A(f"v_mul_f32 v{t0}, v{t2}, v{t2}")
    for e in range(1, 8):
        A(f"v_sub_f32 v{t2}, v{x+e}, v{t1}"); A(f"v_fmac_f32 v{t0}, v{t2}, v{t2}")
    A(f"v_cvt_pk_bf16_f32 v{t1}, 0, v{t1}")
    steps = [("row_ror:8", DPPM), ("row_ror:4", DPPM), ("row_ror:2", DPPM), ("row_ror:1", DPPM),
             ("row_bcast:15", "row_mask:0xa bank_mask:0xf"), ("row_bcast:31", "row_mask:0xc bank_mask:0xf")]
    fill = [f"v_sub_f32 v{x+e}, v{x+e}, v{t1}" for e in range(8)] + [f"v_cvt_pk_bf16_f32 v{x+e}, 0, v{x+e}" for e in range(8)]
    fi = 0
    for ctl, m in steps:
        A(fill[fi]); A(fill[fi+1]); fi += 2
        A(f"v_add_f32_dpp v{t0}, v{t0}, v{t0} {ctl} {m}")
    A(fill[fi]); fi += 1
    A(f"v_mov_b32 v{t2}, {INV512}")
    A(f"v_readlane_b32 s{s_tmp}, v{t0}, 63")
    while fi < 16:
        A(fill[fi]); fi += 1
    A(f"v_mul_f32 v{t2}, s{s_tmp}, v{t2}")
    A(f"v_cvt_pk_bf16_f32 v{t2}, 0, v{t2}")
    A(f"v_add_f32 v{t2}, {EPS}, v{t2}")
    A(f"v_cvt_pk_bf16_f32 v{t2}, 0, v{t2}")
    A(f"v_sqrt_f32 v{t2}, v{t2}")
    A("s_nop 0")
    A(f"v_cvt_pk_bf16_f32 v{t2}, 0, v{t2}")
    A(f"v_rcp_f32 v{t3}, v{t2}")
    A("s_nop 0")
    for e in range(8):
        A(f"v_mul_f32 v{t0}, v{x+e}, v{t3}")
        A(f"v_fma_f32 v{x+e}, -v{t0}, v{t2}, v{x+e}")
        A(f"v_fma_f32 v{x+e}, v{x+e}, v{t3}, v{t0}")
        A(f"v_cvt_pk_bf16_f32 v{x+e}, 0, v{x+e}")

def unpack8(g, src, dst):
    for r in range(4):
        g.A(f"v_lshlrev_b32 v{dst+2*r}, 16, v{src+r}")
        g.A(f"v_and_b32 v{dst+2*r+1}, 0xffff0000, v{src+r}")

def onehot_masks(g, m, t):
    A = g.A
    A(f"v_and_b32 v{t}, 15, v0"); A(f"v_and_b32 v{t+1}, 1, v0"); A(f"v_lshlrev_b32 v{t+1}, 4, v{t+1}")
    A(f"v_mov_b32 v{t+2}, 0xffff"); A(f"v_lshlrev_b32 v{t+1}, v{t+1}, v{t+2}"); A(f"v_lshrrev_b32 v{t}, 1, v{t}")
    for r in range(4):
        A(f"v_cmp_eq_u32 vcc, {r}, v{t}"); A("s_nop 1"); A(f"v_cndmask_b32 v{m+r}, 0, v{t+1}, vcc")

def dump_stamps(g, n, tail):
    A = g.A
    A("s_waitcnt lgkmcnt(0)")
    A(f"s_mov_b32 s80, s{sWS}"); A(f"s_mov_b32 s81, s{sWS+1}"); A(f"s_mov_b32 s82, {WS_SIZE}"); A(f"s_mov_b32 s83, 0x20000")
    A(f"s_lshl_b32 s79, s2, 9"); A(f"s_lshl_b32 s78, s3, 6"); A(f"s_add_u32 s79, s79, s78")
    A(f"s_add_u32 s79, s79, {WS_DBG + (256 if tail else 0)}")
    A(f"v_mov_b32 v2, 0")
    A(f"s_mov_b64 exec, 1")
    for i in range(n):
        A(f"v_mov_b32 v3, s{84+2*i}")
        A(f"buffer_store_dword v3, v2, s[80:83], s79 offen offset:{4*i}")
        A("s_nop 1")
    A(f"s_getreg_b32 s78, hwreg(HW_REG_XCC_ID)")
    A(f"v_mov_b32 v3, s78"); A(f"buffer_store_dword v3, v2, s[80:83], s79 offen offset:60"); A("s_nop 1")
    A(f"v_mov_b32 v3, s75"); A(f"buffer_store_dword v3, v2, s[80:83], s79 offen offset:56")
    A("s_nop 1"); A(f"v_mov_b32 v3, s66"); A(f"buffer_store_dword v3, v2, s[80:83], s79 offen offset:52")
    A(f"s_mov_b64 exec, -1")

def hs2_store(g, pairs, lab):
    A = g.A
    A("s_waitcnt lgkmcnt(0)")
    srd(g, 80, sDBG, 256)
    A("v_mov_b32 v2, 0"); A("s_mov_b64 exec, 1")
    for sg, idx in pairs:
        A(f"v_mov_b32 v3, s{sg}"); A(f"buffer_store_dword v3, v2, s[80:83], s79 offen offset:{4*idx} sc0 sc1"); A("s_nop 1")
    A("s_mov_b64 exec, -1")

def spin_guard(g, cnt, lab_top):
    g.A(f"s_add_u32 s{cnt}, s{cnt}, 1"); g.A(f"s_cmp_lt_u32 s{cnt}, {g.cfg.spin_max}"); g.A(f"s_cbranch_scc1 {lab_top}")

def reduce_a(g, v, t):
    A = g.A
    for ctl in ["row_ror:4", "row_ror:8"]:
        A("s_nop 1")
        for r in range(4): A(f"v_add_f32_dpp v{v+r}, v{v+r}, v{v+r} {ctl} {DPPM}")
    for sw in ["v_permlane16_swap_b32", "v_permlane32_swap_b32"]:
        for r in range(4): A(f"v_mov_b32 v{t+r}, v{v+r}")
        A("s_nop 1")
        for r in range(4): A(f"{sw} v{v+r}, v{t+r}")
        A("s_nop 1")
        for r in range(4): A(f"v_add_f32 v{v+r}, v{v+r}, v{t+r}")


vTAG = 100
def tag_check(g, units, tmp=76, w32=False):
    A = g.A
    def cmp(dst, u):
        if w32: A(f"v_cmp_ne_u32 {dst}, v{u+3}, v{vTAG}")
        else: A(f"v_cmp_ne_u64 {dst}, v[{u+2}:{u+3}], v[{vTAG}:{vTAG+1}]")
    cmp("vcc", units[0])
    for n, u in enumerate(units[1:]):
        cmp(f"s[{tmp}:{tmp+1}]", u)
        if n < len(units) - 2: A(f"s_or_b64 vcc, vcc, s[{tmp}:{tmp+1}]")
    A(f"s_or_b64 s[{tmp}:{tmp+1}], vcc, s[{tmp}:{tmp+1}]")

def pack4(g, src, dst, sel):
    for r in range(3): g.A(f"v_perm_b32 v{dst+r}, v{src+r}, v{src+3}, s{sel+r}")

def unpack4(g, u, tmp, sel):
    g.A(f"v_perm_b32 v{tmp}, v{u}, v{u+1}, s{sel}")
    g.A(f"v_perm_b32 v{u+3}, v{tmp}, v{u+2}, s{sel+1}")

def poll(g, name, loads, units, cnt=75, pre=None, w32=False, sleep=0):
    A = g.A
    A(f"s_mov_b32 s{cnt}, 0")
    if pre is not None:
        loads(); pre()
        A(f"s_branch L_{name}_w")
    g.lab(f"L_{name}")
    loads()
    if pre is not None: g.lab(f"L_{name}_w")
    A("s_waitcnt vmcnt(0)")
    tag_check(g, units, w32=w32)
    A(f"s_cbranch_scc0 L_{name}_done")
    if sleep: A(f"s_sleep {sleep}")
    spin_guard(g, cnt, f"L_{name}")
    g.lab(f"L_{name}_done")

sX, sK, sV, sWQ, sWO, sWG, sWU, sWD, sOUT, sDBG, sWS = 4, 6, 8, 10, 12, 16, 18, 20, 22, 24, 26
sH, sB, sSP, sBH = 28, 29, 30, 31

def gen(cfg):
    g = G(cfg); A = g.A
    g.L.append(f"; @launch grid=(256,1,1) block=(512,1,1) lds={L_END}")
    g.L.append('.amdgcn_target "amdgcn-amd-amdhsa--gfx950"')
    g.L.append(".text"); g.L.append(f".globl {KNAME}"); g.L.append(".p2align 8"); g.L.append(f".type {KNAME},@function")
    g.lab(KNAME)
    A("s_cmp_ge_u32 s2, 256"); A("s_cbranch_scc1 L_exit")
    A("s_load_dwordx16 s[4:19], s[0:1], 0"); A("s_load_dwordx8 s[20:27], s[0:1], 64")
    g.stamp('start')
    if cfg.codepf:
        A("s_getpc_b64 s[66:67]")
        g.lab("L_pc")
        A("v_lshlrev_b32 v2, 5, v0")
        A("v_cmp_gt_u32 vcc, L_codeend-L_pc-32, v2")
        A("s_and_saveexec_b64 s[68:69], vcc")
        A("s_cbranch_execz L_nopfc")
        A(f"global_load_dwordx4 v[120:123], v2, s[66:67]")
        A(f"global_load_dwordx4 v[124:127], v2, s[66:67] offset:16")
        g.lab("L_nopfc")
        A("s_mov_b64 exec, s[68:69]")
    A("v_lshrrev_b32 v1, 6, v0"); A("v_and_b32 v0, 63, v0"); A("v_readfirstlane_b32 s3, v1")
    A("s_and_b32 s28, s2, 7"); A("s_lshr_b32 s29, s28, 1"); A("s_and_b32 s30, s29, 1")
    A("s_xor_b32 s29, s29, s28"); A("s_and_b32 s29, s29, 1"); A("s_lshr_b32 s28, s28, 2"); A("s_lshl_b32 s28, s28, 1")
    A("s_add_u32 s28, s28, s29"); A("s_lshr_b32 s31, s2, 3")
    if cfg.hmap == 0:
        A("s_and_b32 s29, s31, 7"); A("s_lshl_b32 s29, s29, 2"); A("s_add_u32 s28, s28, s29"); A("s_lshr_b32 s29, s31, 3")
    else:
        A("s_and_b32 s29, s31, 7"); A("s_lshl_b32 s28, s28, 3"); A("s_add_u32 s28, s28, s29"); A("s_lshr_b32 s29, s31, 3")
    A("s_lshl_b32 s31, s29, 5"); A("s_add_u32 s31, s31, s28")
    A("s_cmp_ge_u32 s3, 4"); A("s_cbranch_scc1 L_tail")
    stream(g, cfg)
    tail(g, cfg)
    g.lab("L_exit"); A("s_endpgm")
    g.lab("L_codeend")
    A("s_endpgm")
    g.L.append('.section .rodata,"a"'); g.L.append(".p2align 6"); g.L.append(f".amdhsa_kernel {KNAME}")
    for t in ["next_free_vgpr 256", "next_free_sgpr 102", "accum_offset 128", "group_segment_fixed_size 0",
              "kernarg_size 96", "user_sgpr_count 2", "user_sgpr_kernarg_segment_ptr 1", "system_sgpr_workgroup_id_x 1"]:
        g.L.append("  .amdhsa_" + t)
    g.L.append(".end_amdhsa_kernel")
    return "\n".join(g.L) + "\n"

def stream(g, cfg):
    A = g.A; D = cfg.D; NS = cfg.ns; F = cfg.F; LA = cfg.LA
    DYN = NS < 16; POOL = (16 - NS) * 8 * 4
    DB = max(D, cfg.boost)
    assert F == LA and DB + 4 <= LA <= 28
    sKS, sVS, sTS = 32, 36, 40
    sCur, sNxt = 44, 48
    sI, sW4, sM1, sM2, sT = 52, 53, 54, 56, 58
    vZ, vKo4, vVo4 = 5, 8, 12
    vQB, vAcc, vO, vA0, vA1, vMask = 16, 32, 48, 52, 56, 60
    vM, vL, vPP, vT = 64, 65, 66, 68
    A(f"v_lshrrev_b32 v{vT}, 2, v0"); A(f"v_and_b32 v{vT}, 3, v{vT}"); A(f"v_lshlrev_b32 v{vKo4}, 8, v{vT}")
    A(f"v_lshrrev_b32 v{vT}, 4, v0"); A(f"v_lshlrev_b32 v{vT}, 6, v{vT}"); A(f"v_add_u32 v{vKo4}, v{vKo4}, v{vT}")
    A(f"v_and_b32 v{vT}, 3, v0"); A(f"v_lshlrev_b32 v{vT}, 4, v{vT}"); A(f"v_add_u32 v{vKo4}, v{vKo4}, v{vT}")
    A(f"v_lshlrev_b32 v{vVo4}, 4, v0")
    A(f"s_lshl_b32 s{sW4}, s30, 2"); A(f"s_add_u32 s{sW4}, s{sW4}, s3")
    gstride = 16384
    def chunk_off(dst, c, tmp):
        A(f"s_lshr_b32 s{dst}, s{c}, 2"); A(f"s_lshl_b32 s{dst}, s{dst}, 16")
        A(f"s_and_b32 s{tmp}, s{c}, 3"); A(f"s_lshl_b32 s{tmp}, s{tmp}, 10"); A(f"s_add_u32 s{dst}, s{dst}, s{tmp}")
    sRot = 79
    if cfg.rotc:
        A(f"s_lshr_b32 s{sRot}, s2, {cfg.rotc_sh}"); A(f"s_mul_i32 s{sRot}, s{sRot}, {cfg.rotc}"); A(f"s_and_b32 s{sRot}, s{sRot}, 15")
        A(f"s_lshl_b32 s{sT+1}, s{sRot}, 3"); A(f"s_add_u32 s{sT+1}, s{sT+1}, s{sW4}")
        chunk_off(sCur, sT+1, sT)
    else:
        chunk_off(sCur, sW4, sT)
    for G_ in range(1, 4): A(f"s_add_u32 s{sCur+G_}, s{sCur}, {gstride*G_}")
    for t_ in range(1, 4):
        A(f"v_add_u32 v{vKo4+t_}, {4096*t_}, v{vKo4}"); A(f"v_add_u32 v{vVo4+t_}, {4096*t_}, v{vVo4}")
    A(f"s_lshl_b32 s{sT}, s31, 21")
    A("s_waitcnt lgkmcnt(0)")
    srd(g, sKS, sK, 0x200000, sT); srd(g, sVS, sV, 0x200000, sT)
    sTK, sVal, sValN, sPool, sRt = 68, 70, 72, 74, 76
    vNeg = 7
    sGEN, sTAG, sCL = 60, 62, 64
    def issue(p, nxt):
        u = p & 15
        srdr = sKS if p < 16 else sVS
        so = (sNxt if nxt else sCur) + (u >> 2)
        vo = (vKo4 if p < 16 else vVo4) + (u & 3)
        A(f"buffer_load_dwordx4 a[{4*p}:{4*p+3}], v{vo}, s[{srdr}:{srdr+3}], s{so} offen {cfg.ldflags}")
    npre = min(F, cfg.pre)
    def fill(p):
        if p >= cfg.D0: A(f"s_waitcnt vmcnt({cfg.D0-1})")
        issue(p, False)
    if cfg.q == 'direct' and cfg.bar0 >= 0: A("s_barrier")
    for p in range(npre):
        fill(p)
        if cfg.touch and p == cfg.touch_at:
            A(f"buffer_load_dword v110, v{vVo4}, s[{sVS}:{sVS+3}], s{sCur} offen {cfg.ldflags}")
    g.stamp('s_iss')
    A(f"s_load_dword s{sGEN}, s[{sWS}:{sWS+1}], {hex(WS_GEN)}")
    A(f"s_cmp_ge_u32 s2, {NFFN}"); A(f"s_cselect_b32 s{sT}, {NFFN}, 0"); A(f"s_sub_u32 s65, s2, s{sT}")
    A(f"s_cmp_ge_u32 s2, {2*NFFN}"); A(f"s_cselect_b32 s{sT}, {NFFN}, 0"); A(f"s_sub_u32 s65, s65, s{sT}")
    A(f"s_lshl_b32 s{sCL}, s65, 7"); A(f"s_add_u32 s{sCL}, s{sCL}, {WS_CL}")
    srd(g, sTS, sWS, WS_SIZE)
    onehot_masks(g, vMask, vT)
    A(f"v_and_b32 v{vT}, 1, v0"); A(f"v_cmp_eq_u32 s[{sM1}:{sM1+1}], 1, v{vT}")
    A(f"v_and_b32 v{vT}, 2, v0"); A(f"v_cmp_eq_u32 s[{sM2}:{sM2+1}], 2, v{vT}")
    A(f"v_mov_b32 v{vM}, 0xff7fffff"); A(f"v_mov_b32 v{vL}, 0"); A(f"v_mov_b32 v{vZ}, 0")
    for r in range(4): A(f"v_mov_b32 v{vO+r}, 0")
    A(f"v_lshrrev_b32 v{vT}, 4, v0"); A(f"v_lshlrev_b32 v{vT}, 2, v{vT}"); A(f"v_and_b32 v{vT+1}, 3, v0")
    A(f"v_add_u32 v{vT}, v{vT}, v{vT+1}"); A(f"v_lshlrev_b32 v{vT}, 5, v{vT}")
    A(f"v_lshrrev_b32 v{vT+1}, 2, v0"); A(f"v_and_b32 v{vT+1}, 3, v{vT+1}")
    A(f"s_mov_b32 s{sI}, 0")
    sFB, sFK = 77, 80
    if cfg.fb:
        A(f"v_mov_b32 v114, 0"); A(f"ds_write_b32 v{vZ}, v114 offset:{L_MODE}"); A(f"ds_write_b32 v{vZ}, v114 offset:{L_PROG}")
    if DYN:
        A(f"v_mov_b32 v{vNeg}, 0xff7fffff"); A(f"s_mov_b64 s[{sVal}:{sVal+1}], -1"); A(f"s_mov_b64 s[{sValN}:{sValN+1}], -1")
        A(f"s_lshl_b32 s{sPool}, s31, 7"); A(f"s_add_u32 s{sPool}, s{sPool}, {WS_TK}")
    for p in range(npre, F): fill(p)
    A("s_barrier")
    g.stamp('s_bar1')
    q0 = 72
    for w in range(4):
        A(f"ds_read_b128 v[{q0+8*w}:{q0+8*w+3}], v{vT} offset:{L_PART + 512*w}")
        A(f"ds_read_b128 v[{q0+8*w+4}:{q0+8*w+7}], v{vT} offset:{L_PART + 512*w + 16}")
    A("s_waitcnt lgkmcnt(0)")
    for e in range(8):
        A(f"v_add_f32 v{q0+e}, v{q0+e}, v{q0+8+e}"); A(f"v_add_f32 v{q0+16+e}, v{q0+16+e}, v{q0+24+e}")
    for e in range(8): A(f"v_add_f32 v{q0+e}, v{q0+e}, v{q0+16+e}")
    for r in range(4): A(f"v_cvt_pk_bf16_f32 v{q0+8+r}, v{q0+2*r}, v{q0+2*r+1}")
    for t in range(4):
        A(f"v_cmp_eq_u32 vcc, {t}, v{vT+1}"); A("s_nop 1")
        for r in range(4): A(f"v_cndmask_b32 v{vQB+4*t+r}, 0, v{q0+8+r}, vcc")
    g.stamp('s_q')
    A(f"s_add_u32 s{sTAG}, s{sGEN}, {hex(K1)}"); A(f"s_add_u32 s{sTAG+1}, s{sGEN}, {hex(K2)}")
    X = vT
    def qk(n):
        Gi, t = n >> 2, n & 3
        cin = "0" if t == 0 else f"v[{vAcc+4*Gi}:{vAcc+4*Gi+3}]"
        A(f"v_mfma_f32_16x16x32_bf16 v[{vAcc+4*Gi}:{vAcc+4*Gi+3}], a[{4*n}:{4*n+3}], v[{vQB+4*t}:{vQB+4*t+3}], {cin}")
    def buildA(u):
        Gi, t = u >> 2, u & 3
        dst = vA0 if (u & 1) == 0 else vA1
        for r in range(4):
            A(f"v_and_b32_dpp v{dst+r}, v{vPP}, v{vMask+r} row_newbcast:{4*t+Gi} {DPPM}")
    def pv(u):
        n = 16 + u
        src = vA0 if (u & 1) == 0 else vA1
        A(f"v_mfma_f32_16x16x32_bf16 v[{vO}:{vO+3}], v[{src}:{src+3}], a[{4*n}:{4*n+3}], v[{vO}:{vO+3}]")
    def book():
        if not DYN:
            A(f"s_cmp_ge_u32 s{sI}, 15"); A("s_cbranch_scc1 L_final")
            A(f"s_add_u32 s{sT+1}, s{sI}, 1")
            if cfg.rotc: A(f"s_add_u32 s{sT+1}, s{sT+1}, s{sRot}"); A(f"s_and_b32 s{sT+1}, s{sT+1}, 15")
            A(f"s_lshl_b32 s{sT}, s{sT+1}, 3"); A(f"s_add_u32 s{sT}, s{sT}, s{sW4}")
            chunk_off(sNxt, sT, sT+1)
            for G_ in range(1, 4): A(f"s_add_u32 s{sNxt+G_}, s{sNxt}, {gstride*G_}")
        else:
            A(f"s_cmp_ge_u32 s{sI}, {NS-1}"); A("s_cbranch_scc1 L_bdyn")
            A(f"s_add_u32 s{sT+1}, s{sI}, 1"); A(f"s_lshl_b32 s{sT}, s{sT+1}, 3"); A(f"s_add_u32 s{sT}, s{sT}, s{sW4}")
            chunk_off(sNxt, sT, sT+1)
            for G_ in range(1, 4): A(f"s_add_u32 s{sNxt+G_}, s{sNxt}, {gstride*G_}")
            A(f"s_cmp_lg_u32 s{sI}, {NS-2}"); A("s_cbranch_scc1 L_bdone")
            A(f"s_mov_b32 s{sTK}, {cfg.g1}")
            A("s_branch L_breq")
            g.lab("L_bdyn")
            A(f"s_mov_b32 s{sRt}, 0")
            g.lab("L_bwait")
            A("s_waitcnt lgkmcnt(0)")
            A(f"s_cmp_eq_u32 s{sTK+1}, s{sTAG}"); A("s_cbranch_scc1 L_bok")
            A(f"s_cmp_eq_u32 s{sI}, {NS-1}"); A(f"s_cselect_b32 s{sTK}, {cfg.g1}, 1"); A(f"s_mov_b32 s{sTK+1}, 0")
            A(f"s_atomic_add_x2 s[{sTK}:{sTK+1}], s[{sWS}:{sWS+1}], s{sPool} glc")
            A(f"s_add_u32 s{sRt}, s{sRt}, 1"); A(f"s_cmp_lt_u32 s{sRt}, {cfg.spin_max}"); A("s_cbranch_scc1 L_bwait")
            A("s_branch L_final")
            g.lab("L_bok")
            A(f"s_cmp_ge_u32 s{sTK}, {POOL}"); A("s_cbranch_scc1 L_final")
            def goff(dst, u, tmp):
                A(f"s_lshr_b32 s{tmp}, s{u}, 2"); A(f"s_add_u32 s{tmp}, s{tmp}, {8*NS}")
                chunk_off(dst, tmp, tmp+1)
                A(f"s_and_b32 s{tmp}, s{u}, 3"); A(f"s_lshl_b32 s{tmp}, s{tmp}, 14"); A(f"s_add_u32 s{dst}, s{dst}, s{tmp}")
            goff(sNxt, sTK, sT)
            for G_ in range(1, 4): A(f"s_mov_b32 s{sNxt+G_}, 0x400000")
            A(f"s_mov_b32 s{sValN}, 0x11111111")
            if cfg.g1 > 1:
                A(f"s_cmp_lg_u32 s{sI}, {NS-1}"); A("s_cbranch_scc1 L_bone")
                for G_ in range(1, cfg.g1):
                    A(f"s_add_u32 s{sTK}, s{sTK}, 1"); A(f"s_cmp_ge_u32 s{sTK}, {POOL}"); A("s_cbranch_scc1 L_bone")
                    goff(sNxt+G_, sTK, sT)
                    A(f"s_mov_b32 s{sValN}, {hex(int(''.join(['%x' % ((1 << (G_+1)) - 1)]*8), 16))}")
                g.lab("L_bone")
            A(f"s_mov_b32 s{sValN+1}, s{sValN}")
            A(f"s_mov_b32 s{sTK}, 1")
            g.lab("L_breq")
            A(f"s_mov_b32 s{sTK+1}, 0")
            A(f"s_atomic_add_x2 s[{sTK}:{sTK+1}], s[{sWS}:{sWS+1}], s{sPool} glc")
            g.lab("L_bdone")
        if cfg.tailpf:
            A(f"s_cmp_lg_u32 s{sI}, {cfg.tailpf}"); A("s_cbranch_scc1 L_notpf"); A("s_cmp_lg_u32 s3, 0"); A("s_cbranch_scc1 L_notpf")
            A("s_getpc_b64 s[78:79]")
            g.lab("L_pc2")
            A("s_add_u32 s78, s78, L_endcode-L_pc2"); A("s_addc_u32 s79, s79, 0")
            A(f"v_lshlrev_b32 v112, 4, v0")
            for n in range(cfg.tailpf_kb):
                if n: A(f"v_add_u32 v112, 1024, v112")
                A(f"v_min_u32 v113, L_codeend-L_endcode-16, v112")
                A(f"global_load_dwordx4 v[116:119], v113, s[78:79]")
            g.lab("L_notpf")
        if cfg.fb:
            A("s_cmp_lg_u32 s3, 0"); A("s_cbranch_scc1 L_fbq")
            A(f"s_lshl_b32 s{sT}, s{sI}, 1"); A(f"v_mov_b32 v114, s{sT}"); A(f"ds_write_b32 v{vZ}, v114 offset:{L_PROG}")
            g.lab("L_fbq")
        if DB > D and not cfg.fb:
            A(f"s_cmp_ge_u32 s{sI}, {cfg.burst_from}"); A("s_cselect_b64 vcc, -1, 0")
            if 'halfboost' in cfg.diag:
                A(f"s_bitcmp1_b32 s2, 3"); A("s_cselect_b64 vcc, -1, vcc")
            if 'qboost' in cfg.diag:
                A(f"s_and_b32 s{sT}, s2, 0x18"); A(f"s_cmp_eq_u32 s{sT}, 0x18"); A("s_cselect_b64 vcc, -1, vcc")
    def soft(part):
        if part == 0:
            A("s_nop 7")
            for d in range(4):
                def acc(Gi, r): return f"v{vAcc+4*Gi+r}"
                A(f"v_cndmask_b32 v{vT+4}, {acc(d,0)}, {acc(1^d,1)}, s[{sM1}:{sM1+1}]")
                A(f"v_cndmask_b32 v{vT+5}, {acc(2^d,2)}, {acc(3^d,3)}, s[{sM1}:{sM1+1}]")
                A(f"v_cndmask_b32 v{X+d}, v{vT+4}, v{vT+5}, s[{sM2}:{sM2+1}]")
            A("s_nop 1")
            A(f"v_add_f32_dpp v{X}, v{X+1}, v{X} quad_perm:[1,0,3,2] {DPPM}")
            A(f"v_add_f32_dpp v{X+2}, v{X+3}, v{X+2} quad_perm:[1,0,3,2] {DPPM}")
            A("s_nop 1")
            A(f"v_add_f32_dpp v{X}, v{X+2}, v{X} quad_perm:[2,3,0,1] {DPPM}")
            A(f"v_cvt_pk_bf16_f32 v{X}, 0, v{X}"); A(f"v_mul_f32 v{X}, {SCALE}, v{X}"); A(f"v_cvt_pk_bf16_f32 v{X}, 0, v{X}")
            if DYN: A(f"v_cndmask_b32 v{X}, v{vNeg}, v{X}, s[{sVal}:{sVal+1}]")
            A(f"v_mov_b32 v{X+1}, v{X}")
        elif part == 1:
            wave_reduce(g, X+1, "v_max_f32")
        elif part == 2:
            A("s_nop 0")
            A(f"v_readlane_b32 s{sT}, v{X+1}, 63"); A("s_nop 1")
            A(f"v_max_f32 v{X+1}, s{sT}, v{vM}")
            A(f"v_sub_f32 v{X+2}, v{vM}, v{X+1}"); A(f"v_sub_f32 v{X}, v{X}, v{X+1}")
            A(f"v_mul_f32 v{X+2}, {LOG2E}, v{X+2}"); A(f"v_mul_f32 v{X}, {LOG2E}, v{X}")
            A(f"v_exp_f32 v{X+2}, v{X+2}"); A(f"v_exp_f32 v{X}, v{X}")
            A(f"v_mov_b32 v{vM}, v{X+1}")
        else:
            A(f"v_fma_f32 v{vL}, v{vL}, v{X+2}, v{X}")
            A(f"v_cvt_pk_bf16_f32 v{vPP}, v{X}, v{X}")
            for r in range(4): A(f"v_mul_f32 v{vO+r}, v{vO+r}, v{X+2}")
            buildA(0)
    def comp(j):
        if j == 0:
            for n in range(5): yield ('qk', n)
        elif j <= 11: yield ('qk', j + 4)
        elif j <= 15: yield ('soft', j - 12)
        else: yield ('pv', j - 16)
    def emit_comp(kind, x):
        if 'nocomp' in cfg.diag: return
        if kind == 'qk': qk(x)
        elif kind == 'soft': soft(x)
        else:
            if x < 15: buildA(x + 1)
            else: A("s_nop 1")
            pv(x)
    class Trk:
        def __init__(t, H, C): t.H = list(H); t.C = C
        def wait_to(t, newC, emit):
            if newC > t.C:
                w = len(t.H) - newC
                if emit: A(f"s_waitcnt vmcnt({w})")
                t.C = newC
    def iteration(trk, emit):
        for j in range(32):
            pos = j + LA
            req = [x for (k, x) in comp(j) if k == 'qk'] + [16 + x for (k, x) in comp(j) if k == 'pv']
            newC = trk.C
            if req:
                idx = max(i for i, o in enumerate(trk.H) if o == ('L', max(req)))
                newC = max(newC, idx + 1)
            newC = max(newC, len(trk.H) - (DB - 1))
            if DB > D and emit:
                wn = D - 1
                if len(trk.H) - wn > newC and not (j == 0):
                    A(f"s_cbranch_vccnz L_bs{j}")
                    A(f"s_waitcnt vmcnt({wn})")
                    g.lab(f"L_bs{j}")
                elif len(trk.H) - wn > newC:
                    pass
            trk.wait_to(newC, emit)
            if emit and cfg.stamps == 'it0' and f'j{j}' in PROFILES['it0']:
                A(f"s_cmp_lg_u32 s{sI}, 0"); A(f"s_cbranch_scc1 L_st0_{j}"); g.stamp(f'j{j}'); g.lab(f"L_st0_{j}")
            if j == 0 and emit:
                book()
                if DB > D and len(trk.H) - (D - 1) > trk.C:
                    A(f"s_cbranch_vccnz L_bs0"); A(f"s_waitcnt vmcnt({D-1})"); g.lab("L_bs0")
            if emit: issue(pos & 31, pos >= 32)
            if emit and cfg.fb:
                if j == cfg.fb_half:
                    A("s_cmp_lg_u32 s3, 0"); A("s_cbranch_scc1 L_fbh")
                    A(f"s_lshl_b32 s{sT}, s{sI}, 1"); A(f"s_or_b32 s{sT}, s{sT}, 1"); A(f"v_mov_b32 v114, s{sT}"); A(f"ds_write_b32 v{vZ}, v114 offset:{L_PROG}")
                    g.lab("L_fbh")
                if j in cfg.fb_js: A(f"ds_read_b32 v115, v{vZ} offset:{L_MODE}")
                if j - 2 in cfg.fb_js:
                    A("s_waitcnt lgkmcnt(0)"); A(f"v_readfirstlane_b32 s{sT}, v115")
                    A(f"s_cmp_lg_u32 s{sT}, 0"); A("s_cselect_b64 vcc, -1, 0")
            trk.H.append(('N', pos - 32) if pos >= 32 else ('L', pos))
            if emit:
                for (k, x) in comp(j): emit_comp(k, x)
        H2 = [(('L', o[1]) if o[0] == 'N' else (('X',) if o[0] == 'L' else o)) for o in trk.H]
        return Trk(H2, trk.C)
    def final_iteration(H0):
        trk = Trk(H0, 0)
        idx = max(i for i, o in enumerate(trk.H) if o == ('L', 4)); trk.C = idx + 1
        for p in range(LA, 32):
            issue(p, False); trk.H.append(('L', p))
        for j in range(32):
            req = [x for (k, x) in comp(j) if k == 'qk'] + [16 + x for (k, x) in comp(j) if k == 'pv']
            if req:
                idx = max(i for i, o in enumerate(trk.H) if o == ('L', max(req)))
                trk.wait_to(idx + 1, True)
            for (k, x) in comp(j): emit_comp(k, x)
    def endit():
        for G_ in range(4): A(f"s_mov_b32 s{sCur+G_}, s{sNxt+G_}")
        if DYN: A(f"s_mov_b64 s[{sVal}:{sVal+1}], s[{sValN}:{sValN+1}]")
        A(f"s_add_u32 s{sI}, s{sI}, 1")
        if 'iters' in cfg.diag:
            A("s_memrealtime s[82:83]"); A("s_waitcnt lgkmcnt(0)")
            A(f"s_lshl_b32 s{sT}, s3, 7"); A(f"s_lshl_b32 s{sT+1}, s{sI}, 2"); A(f"s_add_u32 s{sT}, s{sT}, s{sT+1}")
            A(f"v_mov_b32 v{vT+6}, s{sT}"); A(f"v_mov_b32 v{vT+7}, s82"); A(f"ds_write_b32 v{vT+6}, v{vT+7} offset:15000")
    entry = Trk([('L', p) for p in range(LA)], 0)
    tA = iteration(Trk(entry.H, entry.C), False)
    assert tA.H[-LA:] == entry.H, (tA.H[-LA:], entry.H)
    if DB > D: A("s_mov_b64 vcc, 0")
    g.lab("L_chunk")
    iteration(Trk(entry.H, entry.C), True)
    endit()
    A("s_branch L_chunk")
    g.lab("L_final")
    A("s_cmp_lg_u32 s3, 0"); A("s_cbranch_scc1 L_noclaim"); A("s_cmp_ge_u32 s2, 128"); A("s_cbranch_scc1 L_noclaim")
    A(f"s_mov_b64 s[66:67], s[{sTAG}:{sTAG+1}]")
    A(f"s_atomic_swap_x2 s[66:67], s[{sWS}:{sWS+1}], s{sCL} glc")
    g.lab("L_noclaim")
    final_iteration([('L', p) for p in range(LA)])
    A(f"s_add_u32 s{sI}, s{sI}, 1")
    g.stamp('s_end')
    A("s_cmp_lg_u32 s3, 0"); A("s_cbranch_scc1 L_norole")
    A("s_waitcnt lgkmcnt(0)")
    A(f"s_cmp_eq_u64 s[66:67], s[{sTAG}:{sTAG+1}]"); A("s_cselect_b32 s65, 255, s65")
    A(f"s_sub_u32 s{sT}, s2, {128 - NFFN}"); A("s_cmp_ge_u32 s2, 128"); A(f"s_cselect_b32 s65, s{sT}, s65")
    A(f"v_mov_b32 v{vT}, s65"); A(f"ds_write_b32 v{vZ}, v{vT} offset:{L_ROLE}")
    g.lab("L_norole")
    wave_reduce(g, vL, "v_add_f32")
    t = vT
    A(f"v_and_b32 v{t+4}, 15, v0"); A(f"v_lshlrev_b32 v{t+4}, 5, v{t+4}")
    A(f"v_lshrrev_b32 v{t+5}, 4, v0"); A(f"v_lshlrev_b32 v{t+5}, 4, v{t+5}"); A(f"v_add_u32 v{t+4}, v{t+4}, v{t+5}")
    A(f"s_lshl_b32 s{sT}, s3, 9"); A(f"v_add_u32 v{t+4}, s{sT}, v{t+4}")
    A(f"v_mov_b32 v{t+6}, v{vM}"); A(f"v_mov_b32 v{t+7}, v{vL}")
    A(f"s_lshl_b32 s{sT}, s3, 3"); A(f"v_mov_b32 v{t+5}, s{sT}")
    A("s_mov_b32 exec_hi, 0")
    A(f"ds_write_b128 v{t+4}, v[{vO}:{vO+3}] offset:{L_PART}")
    A("s_mov_b32 exec_lo, 0"); A("s_mov_b32 exec_hi, 0x80000000")
    A(f"ds_write_b64 v{t+5}, v[{t+6}:{t+7}] offset:{L_ML}")
    A("s_mov_b64 exec, -1")
    A("s_waitcnt lgkmcnt(0)")
    A("s_barrier")
    g.stamp('s_bar2')
    if 'iters' in cfg.diag:
        A(f"s_lshl_b32 s{sT}, s3, 7"); A(f"v_lshlrev_b32 v{vT}, 2, v0"); A(f"v_add_u32 v{vT+1}, s{sT}, v{vT}")
        A(f"ds_read_b32 v{vT+2}, v{vT+1} offset:15000"); A("s_waitcnt lgkmcnt(0)")
        A(f"s_lshl_b32 s{sT}, s2, 2"); A(f"s_add_u32 s{sT}, s{sT}, s3"); A(f"s_lshl_b32 s{sT}, s{sT}, 7"); A(f"s_add_u32 s{sT}, s{sT}, {WS_IT}")
        A("s_mov_b32 exec_hi, 0")
        A(f"buffer_store_dword v{vT+2}, v{vT}, s[{sTS}:{sTS+3}], s{sT} offen")
        A("s_mov_b64 exec, -1")
    if 'hs2' in cfg.diag:
        A("s_or_b32 s79, s2, s3"); A("s_cmp_lg_u32 s79, 0"); A("s_cbranch_scc1 L_hs2s")
        hs2_store(g, [(84, 0), (86, 1), (88, 2), (90, 3)], 's')
        g.lab("L_hs2s")
    elif cfg.stamps:
        A(f"s_mov_b32 s75, s{sI}"); A("s_mov_b32 s66, 0")
        dump_stamps(g, 9 if cfg.stamps == 'it0' else 5, False)
    A("s_endpgm")

def tail(g, cfg):
    A = g.A; SC = cfg.SC
    g.lab("L_tail")
    if cfg.tailprio: A(f"s_setprio {cfg.tailprio}")
    A("s_sub_u32 s3, s3, 4")
    sXS, sWQS, sWOS, sWSS, sOS = 32, 36, 40, 44, 52
    sGS, sUS, sDNS = 56, 36, 40
    sODD, sGEN, sR2M = 48, 50, 50
    sT = 68; sJ = 64
    vZ = 9
    A(f"s_lshl_b32 s{sJ}, s29, 1"); A(f"s_add_u32 s{sJ}, s{sJ}, s30")
    A(f"v_mov_b32 v{vZ}, 0")
    def wo_dma(vo):
        A(f"s_lshl_b32 s{sT}, s28, 17")
        srd(g, sWOS, sWO, 128*1024, sT)
        A(f"v_lshrrev_b32 v{vo}, 3, v0"); A(f"v_lshlrev_b32 v{vo}, 10, v{vo}"); A("v_and_b32 v8, 7, v0"); A("v_lshlrev_b32 v8, 4, v8")
        A(f"v_add_u32 v{vo}, v{vo}, v8")
        A(f"s_lshl_b32 s{sT}, s{sJ}, 7"); A(f"s_lshl_b32 s{sT+1}, s3, 15"); A(f"s_add_u32 s{sT}, s{sT}, s{sT+1}")
        A(f"s_lshl_b32 s{sT+2}, s3, 12"); A(f"s_add_u32 s{sT+2}, s{sT+2}, {L_WO}")
        for n in range(4):
            A(f"s_add_u32 m0, s{sT+2}, {n*1024}")
            A(f"s_add_u32 s{sT+3}, s{sT}, {n*8*1024}")
            A(f"buffer_load_dwordx4 v{vo}, s[{sWOS}:{sWOS+3}], s{sT+3} offen {cfg.wflags} lds")
    def ptouch():
        A("s_cmp_lg_u32 s3, 0"); A("s_cbranch_scc1 L_ptd")
        for base in [sOUT, sWG, sWU, sWD]:
            A(f"s_load_dword s67, s[{base}:{base+1}], 0")
        g.lab("L_ptd")
    def wo_tr():
        for T in range(4):
            fr = 96 + 4*T
            A(f"ds_read_b64_tr_b16 a[{fr}:{fr+1}], v13 offset:{T*32*128}")
            A(f"ds_read_b64_tr_b16 a[{fr+2}:{fr+3}], v13 offset:{T*32*128 + 4*128}")
    def mk_tags():
        A(f"s_add_u32 s{sT}, s{sGEN}, {hex(K1)}"); A(f"s_add_u32 s{sT+1}, s{sGEN}, {hex(K2)}")
        A(f"v_mov_b32 v{vTAG}, s{sT}"); A(f"v_mov_b32 v{vTAG+1}, s{sT+1}")

    if cfg.q == 'coop':
        A("v_lshlrev_b32 v2, 4, v0")
        A("v_lshrrev_b32 v3, 2, v0"); A("v_lshlrev_b32 v3, 13, v3"); A("v_and_b32 v8, 3, v0"); A("v_lshlrev_b32 v8, 4, v8")
        A("v_add_u32 v3, v3, v8")
        A("v_lshrrev_b32 v6, 4, v0"); A("v_lshlrev_b32 v6, 10, v6"); A("v_and_b32 v7, 15, v0")
        A("v_lshlrev_b32 v4, 6, v7"); A("v_add_u32 v4, v4, v6")
        A("v_lshlrev_b32 v5, 3, v7"); A("v_add_u32 v5, v5, v6"); A(f"s_lshl_b32 s{sT}, s{sJ}, 7"); A(f"v_add_u32 v5, s{sT}, v5")
        A(f"s_lshl_b32 s70, s{sJ}, 19"); A(f"s_lshl_b32 s71, s28, 8"); A(f"s_add_u32 s70, s70, s71")
        A(f"s_lshl_b32 s71, s3, 6"); A(f"s_add_u32 s70, s70, s71")
        A(f"s_lshl_b32 s72, s3, 12"); A(f"s_add_u32 s72, s72, {L_WQ}")
        A("s_waitcnt lgkmcnt(0)")
        g.stamp('t_args')
        A(f"s_load_dword s{sGEN}, s[{sWS}:{sWS+1}], {hex(WS_GEN)}")
        srd(g, sXS, sX, 4096)
        for m in range(4): A(f"buffer_load_dwordx4 v[{64+4*m}:{64+4*m+3}], v4, s[{sXS}:{sXS+3}], 0 offen offset:{16*m}")
        A(f"buffer_load_dwordx2 v[80:81], v5, s[{sXS}:{sXS+3}], 0 offen")
        srd(g, sWQS, sWQ, 512*8192)
        for n in range(4):
            A(f"s_add_u32 m0, s72, {n*1024}")
            A(f"s_add_u32 s73, s70, {n*16*8192}")
            A(f"buffer_load_dwordx4 v3, s[{sWQS}:{sWQS+3}], s73 offen {cfg.wqflags} lds")
        A("v_mov_b32 v13, s72")
        nlate = 0
        srd(g, sWSS, sWS, WS_SIZE)
        A("v_lshrrev_b32 v11, 4, v0"); A("v_lshlrev_b32 v11, 3, v11"); A("v_lshrrev_b32 v12, 2, v0"); A("v_and_b32 v12, 3, v12")
        A("v_add_u32 v11, v11, v12"); A("v_and_b32 v12, 3, v0"); A("v_lshlrev_b32 v12, 3, v12")
        A("v_lshlrev_b32 v10, 6, v11"); A("v_add_u32 v13, v13, v10"); A("v_add_u32 v13, v13, v12")
        A(f"s_mul_i32 s74, s3, {4*XN_ROW}")
        A("v_lshrrev_b32 v15, 4, v0"); A(f"v_mul_u32_u24 v15, {XN_ROW}, v15"); A("v_lshlrev_b32 v7, 3, v7"); A("v_add_u32 v15, v15, v7")
        A("v_add_u32 v15, s74, v15")
        A("v_and_b32 v14, 3, v0"); A(f"v_mul_u32_u24 v14, {XN_ROW}, v14"); A("v_lshrrev_b32 v7, 4, v0"); A("v_lshlrev_b32 v7, 4, v7")
        A("v_add_u32 v14, v14, v7"); A("v_add_u32 v14, s74, v14")
        A(f"s_waitcnt vmcnt({4 + nlate})")
        g.stamp('t_x')
        for r in range(16):
            A(f"v_lshlrev_b32 v{24+2*r}, 16, v{64+r}"); A(f"v_and_b32 v{25+2*r}, 0xffff0000, v{64+r}")
        A("v_pk_add_f32 v[56:57], v[24:25], v[26:27]"); A("v_pk_add_f32 v[58:59], v[28:29], v[30:31]")
        for r in range(4, 16, 2):
            A(f"v_pk_add_f32 v[56:57], v[56:57], v[{24+2*r}:{25+2*r}]"); A(f"v_pk_add_f32 v[58:59], v[58:59], v[{26+2*r}:{27+2*r}]")
        A("v_pk_add_f32 v[56:57], v[56:57], v[58:59]")
        A("v_add_f32 v56, v56, v57")
        for ctl in ["row_ror:8", "row_ror:4", "row_ror:2", "row_ror:1"]:
            A("s_nop 1"); A(f"v_add_f32_dpp v56, v56, v56 {ctl} {DPPM}")
        A(f"v_mul_f32 v56, {INV512}, v56"); A("v_mov_b32 v57, v56")
        A("v_pk_add_f32 v[60:61], v[24:25], v[56:57] neg_lo:[0,1] neg_hi:[0,1]")
        A("v_pk_mul_f32 v[58:59], v[60:61], v[60:61]")
        for r in range(1, 16):
            A(f"v_pk_add_f32 v[60:61], v[{24+2*r}:{25+2*r}], v[56:57] neg_lo:[0,1] neg_hi:[0,1]")
            A(f"v_pk_fma_f32 v[58:59], v[60:61], v[60:61], v[58:59]")
        A("v_add_f32 v58, v58, v59")
        A("v_cvt_pk_bf16_f32 v56, 0, v56")
        A("v_lshlrev_b32 v24, 16, v80"); A("v_and_b32 v25, 0xffff0000, v80"); A("v_lshlrev_b32 v26, 16, v81"); A("v_and_b32 v27, 0xffff0000, v81")
        fillv = [f"v_sub_f32 v{24+e}, v{24+e}, v56" for e in range(4)] + [f"v_cvt_pk_bf16_f32 v{24+e}, 0, v{24+e}" for e in range(4)]
        for n, ctl in enumerate(["row_ror:8", "row_ror:4", "row_ror:2", "row_ror:1"]):
            A(f"v_add_f32_dpp v58, v58, v58 {ctl} {DPPM}"); A(fillv[2*n]); A(fillv[2*n+1])
        A(f"v_mul_f32 v58, {INV512}, v58"); A("v_cvt_pk_bf16_f32 v58, 0, v58"); A(f"v_add_f32 v58, {EPS}, v58"); A("v_cvt_pk_bf16_f32 v58, 0, v58")
        A("v_sqrt_f32 v58, v58"); A("s_nop 0"); A("v_cvt_pk_bf16_f32 v58, 0, v58"); A("v_rcp_f32 v59, v58"); A("s_nop 0")
        for e in range(4):
            A(f"v_mul_f32 v60, v{24+e}, v59"); A(f"v_fma_f32 v{24+e}, -v60, v58, v{24+e}"); A(f"v_fma_f32 v{24+e}, v{24+e}, v59, v60")
        A("v_cvt_pk_bf16_f32 v24, v24, v25"); A("v_cvt_pk_bf16_f32 v25, v26, v27")
        A(f"ds_write_b64 v15, v[24:25] offset:{L_XN}")
        g.stamp('t_ln')
        A(f"s_waitcnt vmcnt({nlate}) lgkmcnt(0)")
        g.stamp('t_bar0')
        for T in range(2): A(f"ds_read_b128 v[{24+4*T}:{24+4*T+3}], v14 offset:{L_XN + 64*T}")
        for T in range(2):
            for ct in range(2):
                fr = 40 + (T*2+ct)*4
                A(f"ds_read_b64_tr_b16 v[{fr}:{fr+1}], v13 offset:{T*32*64 + ct*32}")
                A(f"ds_read_b64_tr_b16 v[{fr+2}:{fr+3}], v13 offset:{T*32*64 + ct*32 + 4*64}")
        mk_tags()
        for b in range(4):
            A(f"v_mov_b32 v{64+4*b+2}, v{vTAG}"); A(f"v_mov_b32 v{64+4*b+3}, v{vTAG+1}")
        A(f"s_lshl_b32 s70, s28, 15"); A(f"s_lshl_b32 s71, s{sJ}, 10"); A("s_add_u32 s70, s70, s71")
        A(f"s_lshl_b32 s71, s3, 8"); A("s_add_u32 s70, s70, s71"); A(f"s_add_u32 s70, s70, {WS_QP}")
        A("s_waitcnt lgkmcnt(0)")
        for T in range(2):
            for ct in range(2):
                fr = 40 + (T*2+ct)*4
                cin = "0" if T == 0 else f"v[{56+4*ct}:{56+4*ct+3}]"
                A(f"v_mfma_f32_16x16x32_bf16 v[{56+4*ct}:{56+4*ct+3}], v[{24+4*T}:{24+4*T+3}], v[{fr}:{fr+3}], {cin}")
        A(f"s_lshl_b32 s72, s28, 15"); A(f"s_lshl_b32 s73, s29, 13"); A("s_add_u32 s72, s72, s73")
        A(f"s_lshl_b32 s73, s3, 11"); A("s_add_u32 s72, s72, s73"); A(f"s_add_u32 s72, s72, {WS_QP}")
        A("s_nop 4")
        for b in range(4):
            A(f"v_mov_b32 v{64+4*b}, v{56+b}"); A(f"v_mov_b32 v{64+4*b+1}, v{60+b}")
        A("s_mov_b64 exec, 0xffff")
        for b in range(4):
            if b: A("s_add_u32 s70, s70, 8192")
            A(f"buffer_store_dwordx4 v[{64+4*b}:{64+4*b+3}], v2, s[{sWSS}:{sWSS+3}], s70 offen {SC}")
        A("s_mov_b64 exec, -1")
        g.stamp('t_pub')
        A("v_lshrrev_b32 v8, 4, v0"); A("v_lshlrev_b32 v8, 7, v8"); A("v_and_b32 v7, 15, v0"); A("v_lshlrev_b32 v7, 2, v7")
        A("v_add_u32 v8, v8, v7"); A("s_lshl_b32 s73, s3, 9"); A("v_add_u32 v8, s73, v8"); A(f"v_add_u32 v8, {L_PART}, v8")
        if cfg.qwait: A("s_waitcnt vmcnt(0)")
        def q_loads():
            A(f"buffer_load_dwordx4 v[24:27], v2, s[{sWSS}:{sWSS+3}], s72 offen {SC}")
            A(f"buffer_load_dwordx4 v[28:31], v2, s[{sWSS}:{sWSS+3}], s72 offen offset:1024 {SC}")
        poll(g, "qpoll", q_loads, [24, 28], sleep=cfg.qsleep)
        g.stamp('t_got')
        A("v_add_f32 v24, v24, v28"); A("v_add_f32 v25, v25, v29")
        A("ds_write2_b32 v8, v24, v25 offset1:16")
        A("s_waitcnt lgkmcnt(0)")
        A("s_barrier")
        g.stamp('t_bar1')
    else:
        rotS = 78
        if cfg.rot: A(f"s_lshl_b32 s{rotS}, s29, 2")
        else: A(f"s_mov_b32 s{rotS}, 0")
        A(f"v_add_u32 v2, s{rotS}, v0"); A("v_and_b32 v2, 15, v2"); A("v_and_b32 v8, 48, v0"); A("v_add_u32 v2, v2, v8")
        A("v_lshlrev_b32 v2, 4, v2")
        A("v_lshrrev_b32 v3, 4, v0"); A("v_lshlrev_b32 v3, 20, v3"); A("v_and_b32 v8, 15, v0"); A("v_lshlrev_b32 v8, 4, v8")
        A("v_add_u32 v3, v3, v8")
        A(f"s_lshl_b32 s{sT}, s3, 14"); A(f"s_lshl_b32 s{sT+1}, s28, 8"); A(f"s_add_u32 s{sT}, s{sT}, s{sT+1}")
        A(f"s_lshl_b32 s{sT+1}, s29, 10")
        A("s_waitcnt lgkmcnt(0)")
        g.stamp('t_args')
        A(f"s_load_dword s{sGEN}, s[{sWS}:{sWS+1}], {hex(WS_GEN)}")
        srd(g, sXS, sX, 1024, sT+1)
        A(f"buffer_load_dwordx4 v[4:7], v2, s[{sXS}:{sXS+3}], 0 offen")
        srd(g, sWSS, sWS, WS_SIZE)
        srd(g, sWQS, sWQ, 512*8192)
        for n in range(16):
            A(f"s_add_u32 s79, s{rotS}, {n}"); A("s_and_b32 s79, s79, 15"); A("s_lshl_b32 s79, s79, 16"); A(f"s_add_u32 s79, s79, s{sT}")
            for e in range(2):
                idx = 2*n + e
                if cfg.bar0 == idx: A("s_barrier")
                if e == 1: A("s_add_u32 s79, s79, 8192")
                A(f"buffer_load_dwordx4 a[{4*idx}:{4*idx+3}], v3, s[{sWQS}:{sWQS+3}], s79 offen {cfg.wqflags}")
        if cfg.bar0 == 32: A("s_barrier")
        vMask = 16
        onehot_masks(g, vMask, 20)
        A(f"s_waitcnt vmcnt(32)")
        g.stamp('t_x')
        unpack8(g, 4, 24)
        layernorm8(g, 24, 32, sT)
        for w, (a0, a1) in enumerate([(26, 27), (28, 29), (30, 31)]):
            A(f"s_cmp_eq_u32 s3, {w+1}"); A(f"s_cselect_b64 s[72:73], -1, 0")
            A(f"v_cndmask_b32 v24, v24, v{a0}, s[72:73]"); A(f"v_cndmask_b32 v25, v25, v{a1}, s[72:73]")
        A("v_lshrrev_b32 v38, 16, v24"); A("v_or_b32 v36, v24, v38"); A("v_lshrrev_b32 v38, 16, v25"); A("v_or_b32 v37, v25, v38")
        g.stamp('t_ln')
        vA0, vA1, vQ = 44, 48, 40
        def buildAq(idx):
            n, e = idx >> 1, idx & 1
            dst = vA0 if (idx & 1) == 0 else vA1
            for r in range(4): A(f"v_and_b32_dpp v{dst+r}, v{36+e}, v{vMask+r} row_newbcast:{n} {DPPM}")
        A("s_nop 1")
        buildAq(0)
        for idx in range(32):
            if idx < 31: buildAq(idx + 1)
            if idx % 2 == 0 or idx == 31: A(f"s_waitcnt vmcnt({max(0, 30 - idx)})")
            if idx == 31: A("s_nop 1")
            src = vA0 if (idx & 1) == 0 else vA1
            cin = "0" if idx == 0 else f"v[{vQ}:{vQ+3}]"
            A(f"v_mfma_f32_16x16x32_bf16 v[{vQ}:{vQ+3}], v[{src}:{src+3}], a[{4*idx}:{4*idx+3}], {cin}")
        A("v_and_b32 v52, 15, v0"); A("v_lshlrev_b32 v52, 5, v52"); A("v_lshrrev_b32 v53, 4, v0"); A("v_lshlrev_b32 v53, 4, v53")
        A("v_add_u32 v52, v52, v53"); A(f"s_lshl_b32 s{sT}, s3, 9"); A(f"v_add_u32 v52, s{sT}, v52")
        A("s_nop 1")
        A("s_mov_b32 exec_hi, 0")
        A(f"ds_write_b128 v52, v[{vQ}:{vQ+3}] offset:{L_PART}")
        A("s_mov_b64 exec, -1")
        A("s_waitcnt lgkmcnt(0)")
        g.stamp('t_pub')
        A("s_barrier")
        g.stamp('t_bar1')
        mk_tags()

    if cfg.ns < 16:
        A("s_or_b32 s68, s30, s3"); A("s_cmp_lg_u32 s68, 0"); A("s_cbranch_scc1 L_nopool")
        A("s_lshl_b32 s68, s31, 7"); A(f"s_add_u32 s68, s68, {WS_TK}")
        A("v_mov_b32 v24, 0"); A(f"v_mov_b32 v25, v{vTAG}"); A("v_lshlrev_b32 v26, 3, v0")
        A("s_mov_b64 exec, 0xff")
        A(f"buffer_store_dwordx2 v[24:25], v26, s[{sWSS}:{sWSS+3}], s68 offen {SC}")
        A("s_mov_b64 exec, -1")
        g.lab("L_nopool")
    wo_dma(3)
    if cfg.ptouch: ptouch()
    sU = 65
    A(f"s_lshl_b32 s{sU}, s28, 2"); A(f"s_add_u32 s{sU}, s{sU}, s29"); A(f"s_lshl_b32 s{sU}, s{sU}, 1"); A(f"s_add_u32 s{sU}, s{sU}, s30")
    srd(g, sXS, sX, 4096); srd(g, sOS, sOUT, 4096)
    A(f"s_cmp_lt_u32 s2, 128"); A("s_cbranch_scc1 L_nox"); A("s_cmp_lg_u32 s3, 0"); A("s_cbranch_scc1 L_nox")
    A("v_and_b32 v6, 3, v0"); A("v_lshlrev_b32 v4, 1, v6"); A("s_sub_u32 s73, s2, 128"); A("s_lshl_b32 s73, s73, 3")
    for r in range(4): A(f"buffer_load_ushort v{102+r}, v4, s[{sXS}:{sXS+3}], s73 offen offset:{1024*r}")
    A("s_waitcnt vmcnt(0)")
    for r in range(4): A(f"v_lshlrev_b32 v{102+r}, 16, v{102+r}")
    g.lab("L_nox")
    A("v_lshrrev_b32 v11, 4, v0"); A("v_lshlrev_b32 v11, 3, v11"); A("v_lshrrev_b32 v12, 2, v0"); A("v_and_b32 v12, 3, v12")
    A("v_add_u32 v11, v11, v12"); A("v_and_b32 v12, 3, v0"); A("v_lshlrev_b32 v12, 3, v12")
    A(f"s_lshl_b32 s{sT+2}, s3, 5"); A(f"s_add_u32 s{sT+2}, s{sT+2}, {L_WO}")
    A("v_lshlrev_b32 v13, 7, v11"); A("v_add_u32 v13, v13, v12"); A(f"v_add_u32 v13, s{sT+2}, v13")
    A("s_waitcnt vmcnt(0)")
    A("v_lshlrev_b32 v2, 3, v0")
    A(f"s_lshl_b32 s71, s{sU}, 10"); A(f"s_add_u32 s71, s71, {WS_OP}")
    A("s_lshl_b32 s68, s28, 2"); A("s_add_u32 s68, s68, s3")
    A(f"s_lshl_b32 s73, s68, 11"); A(f"s_add_u32 s73, s73, {WS_OP}")
    A("v_and_b32 v14, 3, v0"); A(f"v_mul_u32_u24 v14, {OA_ROW}, v14"); A("v_lshrrev_b32 v15, 4, v0"); A("v_lshlrev_b32 v15, 4, v15")
    A("v_add_u32 v14, v14, v15")
    A("v_lshlrev_b32 v15, 2, v0"); A(f"s_mul_i32 s69, s3, {OA_ROW}"); A("v_add_u32 v15, s69, v15")
    A("s_lshl_b32 s69, s28, 13"); A(f"s_lshl_b32 s76, s{sJ}, 10"); A("s_add_u32 s69, s69, s76"); A("s_lshl_b32 s76, s3, 8"); A("s_add_u32 s69, s69, s76")
    A("v_lshlrev_b32 v4, 4, v0")
    A(f"s_mov_b32 s{sODD}, 0xaaaaaaaa"); A(f"s_mov_b32 s{sODD+1}, 0xaaaaaaaa")
    A(f"v_mov_b32 v55, v{vTAG}")
    A(f"v_mov_b32 v59, v{vTAG}")
    A(f"s_mov_b32 s{SEL_P}, 0x07060503"); A(f"s_mov_b32 s{SEL_P+1}, 0x07060502"); A(f"s_mov_b32 s{SEL_P+2}, 0x07060501")
    A(f"s_mov_b32 s{SEL_U}, 0x04000c0c"); A(f"s_mov_b32 s{SEL_U+1}, 0x0706000c")
    A("s_waitcnt lgkmcnt(0)")
    g.stamp('t_pf')
    if cfg.fb:
        A("s_cmp_lg_u32 s3, 1"); A("s_cbranch_scc1 L_nomon")
        if 'nomon' in cfg.diag: A("s_branch L_nomon")
        A("s_setprio 0")
        A(f"v_mov_b32 v60, v{vTAG}"); A(f"v_mov_b32 v61, v{vTAG+1}"); A(f"v_mov_b32 v62, v{vTAG}"); A(f"v_mov_b32 v63, v{vTAG+1}")
        A(f"v_readfirstlane_b32 s56, v{vTAG}"); A(f"v_readfirstlane_b32 s57, v{vTAG+1}")
        def wait_prog(val_sgpr, lab):
            A("s_mov_b32 s75, 0")
            g.lab(lab)
            A(f"ds_read_b32 v65, v{vZ} offset:{L_PROG}"); A("s_waitcnt lgkmcnt(0)"); A("v_readfirstlane_b32 s74, v65")
            A(f"s_cmp_ge_u32 s74, s{val_sgpr}"); A(f"s_cbranch_scc1 {lab}g")
            A(f"s_sleep {cfg.fb_sleep}"); spin_guard(g, 75, lab)
            g.lab(lab + "g")
        A("s_and_b32 s78, s2, 7"); A("s_lshl_b32 s78, s78, 6")
        A(f"s_mov_b32 s81, {cfg.fb_lo}")
        A("s_lshr_b32 s79, s2, 3"); A(f"s_cmp_eq_u32 s79, {cfg.fb_rep}"); A("s_cbranch_scc0 L_monf")
        g.lab("L_mon")
        A("s_lshl_b32 s79, s81, 1")
        wait_prog(79, "L_monw")
        A("s_lshl_b32 s80, s81, 10"); A(f"s_add_u32 s80, s80, {WS_FL}")
        for l in range(8):
            A(f"s_add_u32 s74, s80, {l*64}"); A(f"s_load_dword s{36+l}, s[{sWS}:{sWS+1}], s74")
        A("s_add_u32 s76, s80, s78")
        A("s_mov_b64 exec, 15")
        A(f"buffer_store_dwordx4 v[60:63], v4, s[{sWSS}:{sWSS+3}], s76 offen {SC}")
        A("s_mov_b64 exec, -1")
        A("s_waitcnt lgkmcnt(0)")
        A("s_mov_b32 s74, 0")
        for l in range(8):
            A(f"s_cmp_eq_u32 s{36+l}, s56"); A("s_addc_u32 s74, s74, 0")
        A(f"s_cmp_ge_u32 s74, {cfg.fb_thr}"); A("s_cselect_b32 s74, 1, 0")
        A("v_mov_b32 v65, s74"); A(f"ds_write_b32 v{vZ}, v65 offset:{L_MODE}")
        A("v_mov_b32 v68, s74"); A("v_mov_b32 v69, s74"); A(f"v_mov_b32 v70, v{vTAG}"); A(f"v_mov_b32 v71, v{vTAG+1}")
        A("s_add_u32 s76, s76, 512")
        A("s_mov_b64 exec, 15")
        A(f"buffer_store_dwordx4 v[68:71], v4, s[{sWSS}:{sWSS+3}], s76 offen {SC}")
        A("s_mov_b64 exec, -1")
        A(f"s_add_u32 s81, s81, {cfg.fb_step}"); A(f"s_cmp_le_u32 s81, {cfg.fb_hi}"); A("s_cbranch_scc1 L_mon")
        A("s_branch L_monx")
        g.lab("L_monf")
        if 'nofol' in cfg.diag: A("s_branch L_monx")
        A("s_lshl_b32 s79, s81, 1"); A("s_add_u32 s79, s79, 1")
        wait_prog(79, "L_monv")
        A("s_lshl_b32 s80, s81, 10"); A("s_add_u32 s80, s80, s78"); A(f"s_add_u32 s80, s80, {WS_FL + 512}")
        if cfg.fb_frd == 's':
            A(f"s_load_dwordx4 s[36:39], s[{sWS}:{sWS+1}], s80")
            A("s_waitcnt lgkmcnt(0)")
        else:
            A(f"buffer_load_dwordx4 v[72:75], v{vZ}, s[{sWSS}:{sWSS+3}], s80 offen")
            A("s_waitcnt vmcnt(0)")
            for r in range(4): A(f"v_readfirstlane_b32 s{36+r}, v{72+r}")
        A("s_cmp_eq_u64 s[38:39], s[56:57]"); A("s_cbranch_scc0 L_monk")
        A("s_and_b32 s74, s36, 1"); A("v_mov_b32 v65, s74"); A(f"ds_write_b32 v{vZ}, v65 offset:{L_MODE}")
        g.lab("L_monk")
        A(f"s_add_u32 s81, s81, {cfg.fb_step}"); A(f"s_cmp_le_u32 s81, {cfg.fb_hi}"); A("s_cbranch_scc1 L_monf")
        g.lab("L_monx")
        A("s_waitcnt vmcnt(0) lgkmcnt(0)")
        if cfg.tailprio: A(f"s_setprio {cfg.tailprio}")
        g.lab("L_nomon")
    A("s_barrier")
    g.lab("L_endcode")
    g.stamp('t_bar2')
    A(f"ds_read_b32 v16, v{vZ} offset:{L_ROLE}")
    wo_tr()
    A("s_cmp_lg_u32 s3, s29"); A("s_cbranch_scc1 L_noop")
    for w in range(4): A(f"ds_read_b64 v[{24+2*w}:{25+2*w}], v2 offset:{L_PART + 512*w}")
    A(f"ds_read_b128 v[40:43], v{vZ} offset:{L_ML}"); A(f"ds_read_b128 v[44:47], v{vZ} offset:{L_ML+16}")
    A("s_waitcnt lgkmcnt(0)")
    A("v_max_f32 v48, v40, v42"); A("v_max3_f32 v48, v48, v44, v46")
    for r, mr in enumerate([40, 42, 44, 46]): A(f"v_sub_f32 v{32+r}, v{mr}, v48")
    for r in range(4): A(f"v_mul_f32 v{32+r}, {LOG2E}, v{32+r}")
    for r in range(4): A(f"v_exp_f32 v{32+r}, v{32+r}")
    A("s_nop 0")
    A("v_mul_f32 v49, v32, v41"); A("v_mul_f32 v52, v32, v24"); A("v_mul_f32 v53, v32, v25")
    for w, lr in [(1, 43), (2, 45), (3, 47)]:
        A(f"v_fmac_f32 v49, v{32+w}, v{lr}"); A(f"v_fmac_f32 v52, v{32+w}, v{24+2*w}"); A(f"v_fmac_f32 v53, v{32+w}, v{25+2*w}")
    A(f"v_cndmask_b32 v54, v48, v49, s[{sODD}:{sODD+1}]")
    A(f"buffer_store_dwordx4 v[52:55], v4, s[{sWSS}:{sWSS+3}], s71 offen {SC}")
    g.lab("L_noop")
    g.stamp('t_op')
    A("s_waitcnt lgkmcnt(0)")
    A("v_readfirstlane_b32 s66, v16")
    A(f"s_cmp_ge_u32 s66, {NFFN}"); A("s_cbranch_scc1 L_nodma")
    srd(g, sGS, sWG, 512*2752); srd(g, sUS, sWU, 512*2752); srd(g, sDNS, sWD, 1376*1024)
    A("v_lshrrev_b32 v3, 2, v0"); A("v_mul_u32_u24 v3, 2752, v3"); A("v_and_b32 v8, 3, v0"); A("v_lshlrev_b32 v8, 4, v8")
    A("v_add_u32 v3, v3, v8")
    A(f"s_mul_i32 s80, s3, {8*16*2752}"); A("s_lshl_b32 s81, s66, 6"); A("s_add_u32 s80, s80, s81")
    A("s_lshl_b32 s81, s3, 13"); A(f"s_add_u32 s82, s81, {L_G}")
    for k in range(8):
        A(f"s_add_u32 m0, s82, {k*1024}"); A(f"s_add_u32 s83, s80, {k*16*2752}")
        A(f"buffer_load_dwordx4 v3, s[{sGS}:{sGS+3}], s83 offen {cfg.wflags} lds")
        A(f"s_add_u32 m0, s82, {k*1024 + 32768}"); A("s_nop 0")
        A(f"buffer_load_dwordx4 v3, s[{sUS}:{sUS+3}], s83 offen {cfg.wflags} lds")
    if not cfg.dnlate: down_dma(g, cfg, sDNS)
    g.lab("L_nodma")
    def o_loads():
        A(f"buffer_load_dwordx4 v[24:27], v4, s[{sWSS}:{sWSS+3}], s73 offen {SC}")
        A(f"buffer_load_dwordx4 v[28:31], v4, s[{sWSS}:{sWSS+3}], s73 offen offset:1024 {SC}")
    poll(g, "opoll", o_loads, [24, 28], w32=True, sleep=cfg.osleep)
    g.stamp('t_o')
    A(f"v_mov_b32_dpp v32, v26 quad_perm:[0,0,2,2] {DPPM}"); A(f"v_mov_b32_dpp v33, v26 quad_perm:[1,1,3,3] {DPPM}")
    A(f"v_mov_b32_dpp v34, v30 quad_perm:[0,0,2,2] {DPPM}"); A(f"v_mov_b32_dpp v35, v30 quad_perm:[1,1,3,3] {DPPM}")
    A("v_max_f32 v40, v32, v34"); A("v_sub_f32 v41, v32, v40"); A("v_sub_f32 v42, v34, v40")
    A(f"v_mul_f32 v41, {LOG2E}, v41"); A(f"v_mul_f32 v42, {LOG2E}, v42")
    A("v_exp_f32 v41, v41"); A("v_exp_f32 v42, v42")
    A("s_nop 0")
    A("v_mul_f32 v43, v41, v33"); A("v_fmac_f32 v43, v42, v35"); A("v_rcp_f32 v43, v43"); A("s_nop 0")
    A("v_mul_f32 v41, v41, v43"); A("v_mul_f32 v42, v42, v43")
    A("v_mul_f32 v44, v41, v24"); A("v_mul_f32 v45, v41, v25"); A("v_fmac_f32 v44, v42, v28"); A("v_fmac_f32 v45, v42, v29")
    A("v_cvt_pk_bf16_f32 v44, v44, v45")
    A(f"ds_write_b32 v15, v44 offset:{L_OA}")
    A("s_waitcnt lgkmcnt(0)")
    A("s_barrier")
    for T in range(4): A(f"ds_read_b128 v[{24+4*T}:{24+4*T+3}], v14 offset:{L_OA + 64*T}")
    for T in range(4):
        A(f"s_waitcnt lgkmcnt({3-T})")
        cin = "0" if T == 0 else "v[40:43]"
        A(f"v_mfma_f32_16x16x32_bf16 v[40:43], v[{24+4*T}:{24+4*T+3}], a[{96+4*T}:{96+4*T+3}], {cin}")
    A("s_mov_b64 exec, 0xffff")
    A("s_nop 7")
    pack4(g, 40, 56, SEL_P)
    A(f"buffer_store_dwordx4 v[56:59], v4, s[{sWSS}:{sWSS+3}], s69 offen {SC}")
    A("s_mov_b64 exec, -1")
    g.stamp('t_y')
    tail_rest(g, cfg, sWSS, sXS, sOS, sGS, sUS, sDNS, sR2M, vZ)

def down_dma(g, cfg, sDNS):
    A = g.A
    A("v_lshrrev_b32 v3, 4, v0"); A("v_lshlrev_b32 v3, 10, v3"); A("v_and_b32 v8, 15, v0"); A("v_lshlrev_b32 v8, 4, v8")
    A("v_add_u32 v3, v3, v8")
    A("s_lshl_b32 s80, s66, 15"); A("s_lshl_b32 s81, s3, 8"); A("s_add_u32 s80, s80, s81")
    A("s_lshl_b32 s81, s3, 13"); A(f"s_add_u32 s83, s81, {L_DN}")
    for k in range(8):
        A(f"s_add_u32 m0, s83, {k*1024}"); A(f"s_add_u32 s79, s80, {k*4096}")
        A(f"buffer_load_dwordx4 v3, s[{sDNS}:{sDNS+3}], s79 offen {cfg.wflags} lds")

SEL_P = 61; SEL_U = 82
def sum_units(g, units, dst, tmp):
    A = g.A
    for u in units: unpack4(g, u, tmp, SEL_U)
    for r in range(4): A(f"v_add_f32 v{dst+r}, v{units[0]+r}, v{units[1]+r}")
    for u in units[2:]:
        for r in range(4): A(f"v_add_f32 v{dst+r}, v{dst+r}, v{u+r}")

def unpack_units(g, units, dst, tmp):
    A = g.A
    for n, u in enumerate(units):
        d = dst if n == 0 else tmp
        A(f"v_lshlrev_b32 v{d}, 16, v{u}"); A(f"v_and_b32 v{d+1}, 0xffff0000, v{u}")
        A(f"v_lshlrev_b32 v{d+2}, 16, v{u+1}"); A(f"v_and_b32 v{d+3}, 0xffff0000, v{u+1}")
        if n:
            for r in range(4): A(f"v_add_f32 v{dst+r}, v{dst+r}, v{tmp+r}")

def tail_rest(g, cfg, sWSS, sXS, sOS, sGS, sUS, sDNS, sR2M, vZ):
    A = g.A; SC = cfg.SC
    A(f"s_cmp_lt_u32 s66, {NFFN}"); A("s_cbranch_scc1 L_ffn")
    A(f"s_cmp_ge_u32 s66, {NFFN + 128}"); A("s_cbranch_scc1 L_fin")
    A("s_cmp_lg_u32 s3, 0"); A("s_cbranch_scc1 L_fin")
    sTau = 68
    A(f"s_sub_u32 s{sTau}, s66, {NFFN}")
    A("v_lshrrev_b32 v5, 2, v0"); A("v_and_b32 v6, 3, v0")
    A("v_lshlrev_b32 v2, 13, v5"); A("v_lshlrev_b32 v3, 4, v6"); A("v_add_u32 v2, v2, v3")
    A(f"s_lshl_b32 s71, s{sTau}, 6"); A(f"s_add_u32 s72, s71, {16*8192}")
    A(f"s_lshl_b32 s80, s{sTau}, 6"); A(f"s_add_u32 s80, s80, {WS_HM}")
    A(f"v_mov_b32 v10, v{vTAG}"); A(f"v_mov_b32 v11, v{vTAG+1}")
    def y_loads():
        A(f"buffer_load_dwordx4 v[16:19], v2, s[{sWSS}:{sWSS+3}], s71 offen {SC}")
        A(f"buffer_load_dwordx4 v[20:23], v2, s[{sWSS}:{sWSS+3}], s72 offen {SC}")
    poll(g, "r1poll", y_loads, [16, 20], w32=True, sleep=cfg.rsleep)
    g.stamp('t_poll1')
    sum_units(g, [16, 20], 48, 52)
    reduce_a(g, 48, 52)
    for r in range(4): A(f"v_cvt_pk_bf16_f32 v{48+r}, 0, v{48+r}")
    for r in range(4): A(f"v_add_f32 v{48+r}, v{48+r}, v{102+r}")
    A("v_cvt_pk_bf16_f32 v8, v48, v49"); A("v_cvt_pk_bf16_f32 v9, v50, v51")
    A(f"buffer_store_dwordx4 v[8:11], v2, s[{sWSS}:{sWSS+3}], s80 offen {SC}")
    g.stamp('t_mid')
    A(f"v_mov_b32 v7, {32*8192}"); A(f"v_cmp_gt_u32 s[{sR2M}:{sR2M+1}], {NFFN-32}, v5"); A("s_nop 1")
    A(f"v_cndmask_b32 v7, 0, v7, s[{sR2M}:{sR2M+1}]"); A("v_add_u32 v7, v7, v2")
    A(f"s_lshl_b32 s71, s{sTau}, 6"); A(f"s_add_u32 s71, s71, {WS_P2}")
    A(f"s_add_u32 s72, s71, {16*8192}")
    A("v_lshlrev_b32 v56, 16, v8"); A("v_and_b32 v57, 0xffff0000, v8"); A("v_lshlrev_b32 v58, 16, v9"); A("v_and_b32 v59, 0xffff0000, v9")
    A("v_lshlrev_b32 v4, 1, v6"); A(f"s_lshl_b32 s74, s{sTau}, 3")
    def p_loads():
        A(f"buffer_load_dwordx4 v[16:19], v2, s[{sWSS}:{sWSS+3}], s71 offen {SC}")
        A(f"buffer_load_dwordx4 v[20:23], v2, s[{sWSS}:{sWSS+3}], s72 offen {SC}")
        A(f"buffer_load_dwordx4 v[24:27], v7, s[{sWSS}:{sWSS+3}], s71 offen {SC}")
    poll(g, "r2poll", p_loads, [16, 20, 24], w32=True)
    for r in range(3): A(f"v_cndmask_b32 v{24+r}, 0, v{24+r}, s[{sR2M}:{sR2M+1}]")
    sum_units(g, [16, 20, 24], 48, 52)
    reduce_a(g, 48, 52)
    for r in range(4): A(f"v_cvt_pk_bf16_f32 v{48+r}, 0, v{48+r}")
    for r in range(4): A(f"v_add_f32 v{48+r}, v{48+r}, v{56+r}")
    for r in range(4): A(f"v_cvt_pk_bf16_f32 v{48+r}, 0, v{48+r}")
    A("s_mov_b64 exec, 15")
    for r in range(4): A(f"buffer_store_short_d16_hi v{48+r}, v4, s[{sOS}:{sOS+3}], s74 offen offset:{1024*r} {cfg.outsc}")
    A(f"s_cmp_lg_u32 s{sTau}, 0"); A("s_cbranch_scc1 L_nogen")
    A(f"s_mov_b32 s71, {WS_GEN}"); A("s_mov_b64 exec, 1"); A("v_mov_b32 v4, 0")
    A(f"buffer_store_dword v{vTAG}, v4, s[{sWSS}:{sWSS+3}], s71 offen {SC}")
    g.lab("L_nogen")
    A("s_mov_b64 exec, -1")
    g.stamp('t_end')
    A("s_branch L_fin")

    g.lab("L_ffn")
    if cfg.dnlate: down_dma(g, cfg, sDNS)
    A("v_lshrrev_b32 v11, 4, v0"); A("v_lshlrev_b32 v11, 3, v11"); A("v_lshrrev_b32 v12, 2, v0"); A("v_and_b32 v12, 3, v12")
    A("v_add_u32 v11, v11, v12"); A("v_and_b32 v12, 3, v0"); A("v_lshlrev_b32 v12, 3, v12")
    A("s_lshl_b32 s69, s3, 13"); A(f"s_add_u32 s72, s69, {L_G}"); A(f"s_add_u32 s73, s69, {L_DN}")
    A("v_lshlrev_b32 v16, 6, v11"); A("v_add_u32 v16, v16, v12"); A("v_add_u32 v16, s72, v16")
    A("v_add_u32 v17, 0x8000, v16")
    A("v_lshlrev_b32 v18, 8, v11"); A("v_add_u32 v18, v18, v12"); A("v_add_u32 v18, s73, v18")
    A("v_lshlrev_b32 v2, 5, v0"); A("s_lshl_b32 s68, s3, 11"); A("s_and_b32 s69, s66, 15"); A("s_lshl_b32 s69, s69, 13")
    A("s_add_u32 s68, s68, s69"); A(f"s_add_u32 s68, s68, {WS_HM}")
    def h_loads():
        A(f"buffer_load_dwordx4 v[40:43], v2, s[{sWSS}:{sWSS+3}], s68 offen {SC}")
        A(f"buffer_load_dwordx4 v[44:47], v2, s[{sWSS}:{sWSS+3}], s68 offen offset:16 {SC}")
    def dn_frag(n):
        ct, hf = n >> 1, n & 1
        fr = 64 + 4*ct + 2*hf
        A(f"ds_read_b64_tr_b16 a[{fr}:{fr+1}], v18 offset:{ct*32 + hf*4*256}")
    def frags():
        A("v_lshlrev_b32 v3, 4, v0"); A(f"s_mul_i32 s69, s3, {HN_ROW}"); A("v_add_u32 v3, s69, v3")
        A("v_and_b32 v4, 3, v0"); A(f"v_mul_u32_u24 v4, {HN_ROW}, v4"); A("v_lshrrev_b32 v5, 4, v0"); A("v_lshlrev_b32 v5, 4, v5")
        A("v_add_u32 v4, v4, v5"); A("s_lshl_b32 s69, s3, 8"); A("v_add_u32 v4, s69, v4")
        A("v_lshlrev_b32 v6, 2, v0"); A("v_add_u32 v6, s69, v6")
        A("s_mov_b32 s78, 0x07060302"); A("s_mov_b32 s79, 0x05040100")
        for T in range(4):
            for tile in range(4):
                mat, ct = tile >> 1, tile & 1
                base = 16 if mat == 0 else 17
                fr = (T*4 + tile)*4; off = T*32*64 + ct*32
                A(f"ds_read_b64_tr_b16 a[{fr}:{fr+1}], v{base} offset:{off}")
                A(f"ds_read_b64_tr_b16 a[{fr+2}:{fr+3}], v{base} offset:{off + 4*64}")
            A("s_waitcnt lgkmcnt(0)")
        if not cfg.dnlate:
            for n in range(16):
                dn_frag(n)
                if n == 7: A("s_waitcnt lgkmcnt(0)")
    frags()
    def dn_all():
        A("s_waitcnt vmcnt(0)")
        for n in range(16):
            dn_frag(n)
            if n == 7: A("s_waitcnt lgkmcnt(4)")
    poll(g, "hpoll", h_loads, [40, 44], pre=dn_all if cfg.dnlate else None)
    g.stamp('t_poll1')
    A("v_perm_b32 v36, v44, v40, s79"); A("v_perm_b32 v37, v44, v40, s78"); A("v_perm_b32 v38, v45, v41, s79"); A("v_perm_b32 v39, v45, v41, s78")
    for b in range(4): A(f"ds_write_b32 v6, v{36+b} offset:{L_HN + b*HN_ROW}")
    A("s_waitcnt lgkmcnt(0)"); A("s_barrier")
    A(f"ds_read_b128 v[36:39], v3 offset:{L_HN}")
    A("s_mov_b32 s77, 0x07060302")
    A("s_waitcnt lgkmcnt(0)")
    unpack8(g, 36, 24)
    layernorm8(g, 24, 32, 69)
    for r in range(4): A(f"v_perm_b32 v{36+r}, v{24+2*r+1}, v{24+2*r}, s77")
    A(f"ds_write_b128 v3, v[36:39] offset:{L_HN}")
    A("s_waitcnt lgkmcnt(0)"); A("s_barrier")
    for T in range(4): A(f"ds_read_b128 v[{24+4*T}:{24+4*T+3}], v4 offset:{L_HN + 64*T}")
    acc = 64
    A("v_lshlrev_b32 v2, 4, v0"); A("s_lshl_b32 s68, s3, 10"); A("v_add_u32 v3, s68, v2")
    for T in range(4):
        A(f"s_waitcnt lgkmcnt({3-T})")
        for c in range(4):
            cin = "0" if T == 0 else f"v[{acc+4*c}:{acc+4*c+3}]"
            A(f"v_mfma_f32_16x16x32_bf16 v[{acc+4*c}:{acc+4*c+3}], v[{24+4*T}:{24+4*T+3}], a[{(T*4+c)*4}:{(T*4+c)*4+3}], {cin}")
    A("s_mov_b64 exec, 0xffff")
    A("s_nop 4")
    for c in range(4): A(f"ds_write_b128 v3, v[{acc+4*c}:{acc+4*c+3}] offset:{L_P + c*256}")
    A("s_mov_b64 exec, -1")
    A("s_waitcnt lgkmcnt(0)"); A("s_barrier")
    g.stamp('t_mid')
    for w in range(4): A(f"ds_read_b128 v[{24+4*w}:{24+4*w+3}], v2 offset:{L_P + w*1024}")
    A("v_lshrrev_b32 v4, 5, v0"); A(f"v_mul_u32_u24 v4, {2*ACT_ROW}, v4"); A("v_and_b32 v5, 31, v0"); A("v_lshlrev_b32 v5, 1, v5")
    A("v_add_u32 v4, v4, v5"); A(f"s_mul_i32 s68, s3, {4*ACT_ROW}"); A("v_add_u32 v4, s68, v4")
    A("v_and_b32 v5, 3, v0"); A(f"v_mul_u32_u24 v5, {ACT_ROW}, v5"); A("v_lshrrev_b32 v6, 4, v0"); A("v_lshlrev_b32 v6, 4, v6")
    A("v_add_u32 v5, v5, v6"); A("v_add_u32 v5, s68, v5")
    A("v_mov_b32 v40, 0x3d372713")
    A("s_waitcnt lgkmcnt(0)")
    for r in range(4):
        A(f"v_add_f32 v{24+r}, v{24+r}, v{28+r}"); A(f"v_add_f32 v{32+r}, v{32+r}, v{36+r}")
    for r in range(4): A(f"v_add_f32 v{24+r}, v{24+r}, v{32+r}")
    A("s_nop 1")
    A("v_permlane32_swap_b32 v24, v26"); A("v_permlane32_swap_b32 v25, v27")
    A("s_nop 1")
    for r in range(4): A(f"v_cvt_pk_bf16_f32 v{24+r}, 0, v{24+r}")
    def gelu_steps(gt, up, t):
        return [f"v_mul_f32 v{t}, v{gt}, v{gt}", f"v_mul_f32 v{t}, v{t}, v{gt}", f"v_fma_f32 v{t}, v{t}, v40, v{gt}",
                f"v_mul_f32 v{t}, 0xc0135761, v{t}", f"v_exp_f32 v{t}, v{t}", None, f"v_add_f32 v{t}, 1.0, v{t}",
                f"v_rcp_f32 v{t}, v{t}", None, f"v_mul_f32 v{t}, v{t}, v{gt}", f"v_cvt_pk_bf16_f32 v{t}, 0, v{t}",
                f"v_mul_f32 v{t}, v{t}, v{up}", f"v_cvt_pk_bf16_f32 v{t}, 0, v{t}"]
    for a, b in zip(gelu_steps(24, 26, 28), gelu_steps(25, 27, 32)):
        if a is None: A("s_nop 0")
        else: A(a); A(b)
    A(f"ds_write_b16_d16_hi v4, v28 offset:{L_ACT}"); A(f"ds_write_b16_d16_hi v4, v32 offset:{L_ACT + ACT_ROW}")
    A("s_lshl_b32 s68, s66, 13"); A("s_lshl_b32 s69, s3, 11"); A("s_add_u32 s68, s68, s69"); A(f"s_add_u32 s68, s68, {WS_P2}")
    A("s_waitcnt lgkmcnt(0)")
    A(f"ds_read_b128 v[24:27], v5 offset:{L_ACT}")
    A("s_waitcnt lgkmcnt(0)")
    for c in range(8):
        A(f"v_mfma_f32_16x16x32_bf16 v[{acc+4*c}:{acc+4*c+3}], v[24:27], a[{64+4*c}:{64+4*c+3}], 0")
    A("s_mov_b64 exec, 0xffff"); A("s_nop 3")
    for c in range(8):
        a = acc + 4*c
        pack4(g, a, a, SEL_P)
        A(f"v_mov_b32 v{a+3}, v{vTAG}")
        A(f"buffer_store_dwordx4 v[{a}:{a+3}], v2, s[{sWSS}:{sWSS+3}], s68 offen offset:{256*c} {SC}")
    A("s_mov_b64 exec, -1")
    g.stamp('t_end')
    g.lab("L_fin")
    if 'hs2' in cfg.diag:
        A("s_cmp_lg_u32 s3, 0"); A("s_cbranch_scc1 L_hs2x")
        A("s_cmp_lg_u32 s2, 0"); A("s_cbranch_scc1 L_hs2a")
        A("s_mov_b32 s79, 0"); hs2_store(g, [(90, 4), (94, 5), (66, 15)], 'a')
        g.lab("L_hs2a")
        A("s_cmp_lg_u32 s66, 0"); A("s_cbranch_scc1 L_hs2b")
        A("s_mov_b32 s79, 0"); hs2_store(g, [(96, 12), (98, 13), (100, 14)], 'b')
        g.lab("L_hs2b")
        A(f"s_sub_u32 s78, s66, {NFFN}"); A("s_cmp_ge_u32 s78, 4"); A("s_cbranch_scc1 L_hs2x")
        A("s_lshl_b32 s79, s78, 2"); hs2_store(g, [(100, 8)], 'c')
        A("s_cmp_lg_u32 s78, 0"); A("s_cbranch_scc1 L_hs2x")
        A("s_mov_b32 s79, 0"); hs2_store(g, [(96, 6), (98, 7)], 'd')
        g.lab("L_hs2x")
    elif cfg.stamps: dump_stamps(g, 9, True)
    A("s_endpgm")

if __name__ == "__main__":
    cfg = Cfg()
    import argparse
    ap = argparse.ArgumentParser()
    ap.add_argument("-o", default="k.s")
    ap.add_argument("--D", type=int, default=5); ap.add_argument("--LA", type=int, default=28)
    ap.add_argument("--pre", type=int, default=16); ap.add_argument("--D0", type=int, default=5)
    ap.add_argument("--stamps", default=None); ap.add_argument("--wflags", default="nt"); ap.add_argument("--ldflags", default="nt")
    ap.add_argument("--sc", default="sc0 sc1"); ap.add_argument("--tailprio", type=int, default=3)
    ap.add_argument("--diag", default=""); ap.add_argument("--bar0", type=int, default=24)
    ap.add_argument("--nocodepf", action="store_true"); ap.add_argument("--notouch", action="store_true"); ap.add_argument("--noptouch", action="store_true")
    ap.add_argument("--boost", type=int, default=0); ap.add_argument("--burst_from", type=int, default=14)
    ap.add_argument("--qwait", type=int, default=1)
    ap.add_argument("--dnlate", type=int, default=1)
    ap.add_argument("--touch_at", type=int, default=9)
    ap.add_argument("--hmap", type=int, default=0)
    ap.add_argument("--osleep", type=int, default=0); ap.add_argument("--qsleep", type=int, default=0); ap.add_argument("--rsleep", type=int, default=0)
    ap.add_argument("--ns", type=int, default=16); ap.add_argument("--g1", type=int, default=2)
    ap.add_argument("--tailpf", type=int, default=0); ap.add_argument("--tailpf_kb", type=int, default=6)
    ap.add_argument("--fb", type=int, default=0); ap.add_argument("--fb_thr", type=int, default=5); ap.add_argument("--fb_lo", type=int, default=2); ap.add_argument("--fb_js", default="4,20,26"); ap.add_argument("--fb_hi", type=int, default=14); ap.add_argument("--fb_step", type=int, default=1); ap.add_argument("--fb_sleep", type=int, default=4)
    ap.add_argument("--fb_np", type=int, default=8); ap.add_argument("--fb_rd", default="s"); ap.add_argument("--fb_wr", default="v")
    ap.add_argument("--fb_half", type=int, default=14); ap.add_argument("--fb_rep", type=int, default=16)
    ap.add_argument("--fb_frd", default="s")
    ap.add_argument("--rotc", type=int, default=0); ap.add_argument("--rotc_sh", type=int, default=3)
    ap.add_argument("--outsc", default="")
    ap.add_argument("--norot", action="store_true"); ap.add_argument("--wqflags", default="nt"); ap.add_argument("--q", default="coop")
    a = ap.parse_args()
    if 'hs2' in a.diag: a.stamps = 'main'
    cfg.D = a.D; cfg.LA = a.LA; cfg.F = a.LA; cfg.pre = a.pre; cfg.D0 = a.D0; cfg.stamps = a.stamps
    cfg.wflags = a.wflags; cfg.ldflags = a.ldflags; cfg.SC = a.sc; cfg.tailprio = a.tailprio; cfg.diag = a.diag; cfg.bar0 = a.bar0
    cfg.codepf = not a.nocodepf; cfg.touch = not a.notouch; cfg.ptouch = not a.noptouch
    cfg.boost = a.boost if a.boost else max(a.D, a.LA - 4); cfg.burst_from = a.burst_from
    cfg.rot = not a.norot; cfg.wqflags = a.wqflags; cfg.q = a.q; cfg.qwait = a.qwait; cfg.outsc = a.outsc; cfg.rotc = a.rotc; cfg.rotc_sh = a.rotc_sh; cfg.fb_frd = a.fb_frd; cfg.fb_half = a.fb_half; cfg.fb_rep = a.fb_rep; cfg.fb_np = a.fb_np; cfg.fb_rd = a.fb_rd; cfg.fb_wr = a.fb_wr; cfg.fb = a.fb; cfg.fb_thr = a.fb_thr; cfg.fb_lo = a.fb_lo; cfg.fb_js = [int(x) for x in a.fb_js.split(',')]; cfg.fb_hi = a.fb_hi; cfg.fb_step = a.fb_step; cfg.fb_sleep = a.fb_sleep; cfg.tailpf = a.tailpf; cfg.tailpf_kb = a.tailpf_kb; cfg.ns = a.ns; cfg.g1 = a.g1; cfg.osleep = a.osleep; cfg.qsleep = a.qsleep; cfg.rsleep = a.rsleep; cfg.hmap = a.hmap; cfg.touch_at = a.touch_at; cfg.dnlate = a.dnlate
    open(a.o, "w").write(gen(cfg))
```

```python
import sys
KNAME = "sequential_preLN__gqa_block_cached__geglu_ffn__decode_kernel"

class Cfg:
    D = 5; LA = 28; F = 28; pre = 16; D0 = 5; bar0 = 24; rot = True; wqflags = 'nt'; codepf = True; D2 = 32
    boost = 24; burst_from = 14; touch = True; q = 'coop'; ptouch = True
    ldflags = "nt"; wflags = "nt"
    stamps = None
    SC = "sc0 sc1"
    spin_max = 1 << 18
    tailprio = 3
    diag = ''

WS_Y2   = 0
WS_OP   = 0x40000
WS_P2   = 0x80000
WS_HM   = 0xD8000
WS_CL   = 0xF8000
WS_TK   = 0xFA000
WS_FB   = 0xFE000
WS_GEN  = 0xFF000
WS_QP   = 0x100000
WS_FL   = 0x200000
WS_DBG  = 0x260000
WS_IT   = 0x280000
WS_SIZE = 0x2C0000
K1 = 0x9E3779B9; K2 = 0x7F4A7C15
NFFN = 43
L_XN   = 5248
XN_ROW = 144
L_QV   = 1024
L_PART = 2048
L_ML   = 4096
L_FLAG = L_ML + 32
L_PROG = L_ML + 36
L_MODE = L_ML + 40
L_ROLE = L_ML + 44
L_OA   = 4160
OA_ROW = 272
L_HN   = 5248
HN_ROW = 1040
L_P    = L_HN + 4*HN_ROW
L_ACT  = L_P + 4096
ACT_ROW = 80
L_WQ   = 16384
L_WO   = 32768
L_G    = 49152
L_U    = L_G + 32768
L_DN   = L_U + 32768
L_END  = L_DN + 32768
assert L_OA + 4*OA_ROW <= L_HN and L_ACT + 16*ACT_ROW <= L_WQ and L_HN % 16 == 0 and L_P % 16 == 0 and L_ACT % 16 == 0

SCALE = "0x3db504f3"; LOG2E = "0x3fb8aa3b"; EPS = "0x3727c5ac"; INV512 = "0x3b000000"
DPPM = "row_mask:0xf bank_mask:0xf"

PROFILES = {
  'main': {'start':0, 's_q':1, 's_end':2, 's_bar2':3,
           't_bar1':1, 't_op':2, 't_o':3, 't_bar2':4, 't_y':5, 't_poll1':6, 't_mid':7, 't_end':8},
  'it0':  {'start':0, 's_iss':1, 's_bar1':2, 's_q':3, 'j0':4, 'j5':5, 'j11':6, 'j16':7, 'j31':8,
           't_args':1, 't_x':2, 't_ln':3, 't_bar0':4, 't_pub':5, 't_got':6, 't_bar1':7, 't_pf':8},
  'clr':  {'start':0, 's_c0':1, 's_c1':2, 's_c2':3, 's_q':4},
  'pro':  {'start':0, 's_iss':1, 's_bar1':2, 's_q':3, 's_it0':4,
           't_args':1, 't_x':2, 't_ln':3, 't_bar0':4, 't_pub':5, 't_got':6, 't_bar1':7, 't_pf':8},
}

class G:
    def __init__(s, cfg): s.L = []; s.cfg = cfg
    def A(s, t): s.L.append("  " + t)
    def lab(s, n): s.L.append(n + ":")
    def stamp(s, name):
        p = s.cfg.stamps
        if p and name in PROFILES[p]:
            i = PROFILES[p][name]
            s.A(f"s_memrealtime s[{84+2*i}:{85+2*i}]")

def srd(g, d, base, size, off_sgpr=None):
    if off_sgpr is None:
        g.A(f"s_mov_b32 s{d}, s{base}"); g.A(f"s_mov_b32 s{d+1}, s{base+1}")
    else:
        g.A(f"s_add_u32 s{d}, s{base}, s{off_sgpr}"); g.A(f"s_addc_u32 s{d+1}, s{base+1}, 0")
    g.A(f"s_mov_b32 s{d+2}, {size}"); g.A(f"s_mov_b32 s{d+3}, 0x20000")

def wave_reduce(g, v, op):
    for ctl in ["row_ror:8", "row_ror:4", "row_ror:2", "row_ror:1"]:
        g.A("s_nop 1"); g.A(f"{op}_dpp v{v}, v{v}, v{v} {ctl} {DPPM}")
    g.A("s_nop 1"); g.A(f"{op}_dpp v{v}, v{v}, v{v} row_bcast:15 row_mask:0xa bank_mask:0xf")
    g.A("s_nop 1"); g.A(f"{op}_dpp v{v}, v{v}, v{v} row_bcast:31 row_mask:0xc bank_mask:0xf")

def layernorm8(g, x, t, s_tmp):
    A = g.A
    t0, t1, t2, t3 = t, t+1, t+2, t+3
    A(f"v_add_f32 v{t0}, v{x}, v{x+1}"); A(f"v_add_f32 v{t1}, v{x+2}, v{x+3}")
    A(f"v_add_f32 v{t2}, v{x+4}, v{x+5}"); A(f"v_add_f32 v{t3}, v{x+6}, v{x+7}")
    A(f"v_add_f32 v{t0}, v{t0}, v{t1}"); A(f"v_add_f32 v{t2}, v{t2}, v{t3}"); A(f"v_add_f32 v{t0}, v{t0}, v{t2}")
    wave_reduce(g, t0, "v_add_f32")
    A(f"v_mov_b32 v{t1}, {INV512}")
    A(f"v_readlane_b32 s{s_tmp}, v{t0}, 63")
    A("s_nop 1")
    A(f"v_mul_f32 v{t1}, s{s_tmp}, v{t1}")
    A(f"v_sub_f32 v{t2}, v{x}, v{t1}")
    A(f"v_mul_f32 v{t0}, v{t2}, v{t2}")
    for e in range(1, 8):
        A(f"v_sub_f32 v{t2}, v{x+e}, v{t1}"); A(f"v_fmac_f32 v{t0}, v{t2}, v{t2}")
    A(f"v_cvt_pk_bf16_f32 v{t1}, 0, v{t1}")
    steps = [("row_ror:8", DPPM), ("row_ror:4", DPPM), ("row_ror:2", DPPM), ("row_ror:1", DPPM),
             ("row_bcast:15", "row_mask:0xa bank_mask:0xf"), ("row_bcast:31", "row_mask:0xc bank_mask:0xf")]
    fill = [f"v_sub_f32 v{x+e}, v{x+e}, v{t1}" for e in range(8)] + [f"v_cvt_pk_bf16_f32 v{x+e}, 0, v{x+e}" for e in range(8)]
    fi = 0
    for ctl, m in steps:
        A(fill[fi]); A(fill[fi+1]); fi += 2
        A(f"v_add_f32_dpp v{t0}, v{t0}, v{t0} {ctl} {m}")
    A(fill[fi]); fi += 1
    A(f"v_mov_b32 v{t2}, {INV512}")
    A(f"v_readlane_b32 s{s_tmp}, v{t0}, 63")
    while fi < 16:
        A(fill[fi]); fi += 1
    A(f"v_mul_f32 v{t2}, s{s_tmp}, v{t2}")
    A(f"v_cvt_pk_bf16_f32 v{t2}, 0, v{t2}")
    A(f"v_add_f32 v{t2}, {EPS}, v{t2}")
    A(f"v_cvt_pk_bf16_f32 v{t2}, 0, v{t2}")
    A(f"v_sqrt_f32 v{t2}, v{t2}")
    A("s_nop 0")
    A(f"v_cvt_pk_bf16_f32 v{t2}, 0, v{t2}")
    A(f"v_rcp_f32 v{t3}, v{t2}")
    A("s_nop 0")
    for e in range(8):
        A(f"v_mul_f32 v{t0}, v{x+e}, v{t3}")
        A(f"v_fma_f32 v{x+e}, -v{t0}, v{t2}, v{x+e}")
        A(f"v_fma_f32 v{x+e}, v{x+e}, v{t3}, v{t0}")
        A(f"v_cvt_pk_bf16_f32 v{x+e}, 0, v{x+e}")

def unpack8(g, src, dst):
    for r in range(4):
        g.A(f"v_lshlrev_b32 v{dst+2*r}, 16, v{src+r}")
        g.A(f"v_and_b32 v{dst+2*r+1}, 0xffff0000, v{src+r}")

def onehot_masks(g, m, t):
    A = g.A
    A(f"v_and_b32 v{t}, 15, v0"); A(f"v_and_b32 v{t+1}, 1, v0"); A(f"v_lshlrev_b32 v{t+1}, 4, v{t+1}")
    A(f"v_mov_b32 v{t+2}, 0xffff"); A(f"v_lshlrev_b32 v{t+1}, v{t+1}, v{t+2}"); A(f"v_lshrrev_b32 v{t}, 1, v{t}")
    for r in range(4):
        A(f"v_cmp_eq_u32 vcc, {r}, v{t}"); A("s_nop 1"); A(f"v_cndmask_b32 v{m+r}, 0, v{t+1}, vcc")

def dump_stamps(g, n, tail):
    A = g.A
    A("s_waitcnt lgkmcnt(0)")
    A(f"s_mov_b32 s80, s{sWS}"); A(f"s_mov_b32 s81, s{sWS+1}"); A(f"s_mov_b32 s82, {WS_SIZE}"); A(f"s_mov_b32 s83, 0x20000")
    A(f"s_lshl_b32 s79, s2, 9"); A(f"s_lshl_b32 s78, s3, 6"); A(f"s_add_u32 s79, s79, s78")
    A(f"s_add_u32 s79, s79, {WS_DBG + (256 if tail else 0)}")
    A(f"v_mov_b32 v2, 0")
    A(f"s_mov_b64 exec, 1")
    for i in range(n):
        A(f"v_mov_b32 v3, s{84+2*i}")
        A(f"buffer_store_dword v3, v2, s[80:83], s79 offen offset:{4*i}")
        A("s_nop 1")
    A(f"s_getreg_b32 s78, hwreg(HW_REG_XCC_ID)")
    A(f"v_mov_b32 v3, s78"); A(f"buffer_store_dword v3, v2, s[80:83], s79 offen offset:60"); A("s_nop 1")
    A(f"v_mov_b32 v3, s75"); A(f"buffer_store_dword v3, v2, s[80:83], s79 offen offset:56")
    A("s_nop 1"); A(f"v_mov_b32 v3, s66"); A(f"buffer_store_dword v3, v2, s[80:83], s79 offen offset:52")
    A(f"s_mov_b64 exec, -1")

def hs2_store(g, pairs, lab):
    A = g.A
    A("s_waitcnt lgkmcnt(0)")
    srd(g, 80, sDBG, 256)
    A("v_mov_b32 v2, 0"); A("s_mov_b64 exec, 1")
    for sg, idx in pairs:
        A(f"v_mov_b32 v3, s{sg}"); A(f"buffer_store_dword v3, v2, s[80:83], s79 offen offset:{4*idx} sc0 sc1"); A("s_nop 1")
    A("s_mov_b64 exec, -1")

def spin_guard(g, cnt, lab_top):
    g.A(f"s_add_u32 s{cnt}, s{cnt}, 1"); g.A(f"s_cmp_lt_u32 s{cnt}, {g.cfg.spin_max}"); g.A(f"s_cbranch_scc1 {lab_top}")

def reduce_a(g, v, t):
    A = g.A
    for ctl in ["row_ror:4", "row_ror:8"]:
        A("s_nop 1")
        for r in range(4): A(f"v_add_f32_dpp v{v+r}, v{v+r}, v{v+r} {ctl} {DPPM}")
    for sw in ["v_permlane16_swap_b32", "v_permlane32_swap_b32"]:
        for r in range(4): A(f"v_mov_b32 v{t+r}, v{v+r}")
        A("s_nop 1")
        for r in range(4): A(f"{sw} v{v+r}, v{t+r}")
        A("s_nop 1")
        for r in range(4): A(f"v_add_f32 v{v+r}, v{v+r}, v{t+r}")


vTAG = 100
def tag_check(g, units, tmp=76, w32=False):
    A = g.A
    def cmp(dst, u):
        if w32: A(f"v_cmp_ne_u32 {dst}, v{u+3}, v{vTAG}")
        else: A(f"v_cmp_ne_u64 {dst}, v[{u+2}:{u+3}], v[{vTAG}:{vTAG+1}]")
    cmp("vcc", units[0])
    for n, u in enumerate(units[1:]):
        cmp(f"s[{tmp}:{tmp+1}]", u)
        if n < len(units) - 2: A(f"s_or_b64 vcc, vcc, s[{tmp}:{tmp+1}]")
    A(f"s_or_b64 s[{tmp}:{tmp+1}], vcc, s[{tmp}:{tmp+1}]")

def pack4(g, src, dst, sel):
    for r in range(3): g.A(f"v_perm_b32 v{dst+r}, v{src+r}, v{src+3}, s{sel+r}")

def unpack4(g, u, tmp, sel):
    g.A(f"v_perm_b32 v{tmp}, v{u}, v{u+1}, s{sel}")
    g.A(f"v_perm_b32 v{u+3}, v{tmp}, v{u+2}, s{sel+1}")

def poll2(g, name, loads, flags_a, nloc, flags_b, units, cnt=75, w32=False):
    A = g.A
    A(f"s_mov_b32 s{cnt}, 0")
    g.lab(f"L_{name}")
    for n in range(nloc):
        loads(flags_a); A("s_waitcnt vmcnt(0)"); tag_check(g, units, w32=w32); A(f"s_cbranch_scc0 L_{name}_done")
    loads(flags_b); A("s_waitcnt vmcnt(0)"); tag_check(g, units, w32=w32); A(f"s_cbranch_scc0 L_{name}_done")
    spin_guard(g, cnt, f"L_{name}")
    g.lab(f"L_{name}_done")

def poll(g, name, loads, units, cnt=75, pre=None, w32=False, sleep=0):
    A = g.A
    A(f"s_mov_b32 s{cnt}, 0")
    if pre is not None:
        loads(); pre()
        A(f"s_branch L_{name}_w")
    g.lab(f"L_{name}")
    loads()
    if pre is not None: g.lab(f"L_{name}_w")
    A("s_waitcnt vmcnt(0)")
    tag_check(g, units, w32=w32)
    A(f"s_cbranch_scc0 L_{name}_done")
    if sleep: A(f"s_sleep {sleep}")
    spin_guard(g, cnt, f"L_{name}")
    g.lab(f"L_{name}_done")

sX, sK, sV, sWQ, sWO, sWG, sWU, sWD, sOUT, sDBG, sWS = 4, 6, 8, 10, 12, 16, 18, 20, 22, 24, 26
sH, sB, sSP, sBH = 28, 29, 30, 31

def gen(cfg):
    g = G(cfg); A = g.A
    g.L.append(f"; @launch grid=(256,1,1) block=(512,1,1) lds={L_END}")
    g.L.append('.amdgcn_target "amdgcn-amd-amdhsa--gfx950"')
    g.L.append(".text"); g.L.append(f".globl {KNAME}"); g.L.append(".p2align 8"); g.L.append(f".type {KNAME},@function")
    g.lab(KNAME)
    A("s_cmp_ge_u32 s2, 256"); A("s_cbranch_scc1 L_exit")
    A("s_load_dwordx16 s[4:19], s[0:1], 0"); A("s_load_dwordx8 s[20:27], s[0:1], 64")
    g.stamp('start')
    if cfg.codepf:
        A("s_getpc_b64 s[66:67]")
        g.lab("L_pc")
        A("v_lshlrev_b32 v2, 5, v0")
        A("v_cmp_gt_u32 vcc, L_codeend-L_pc-32, v2")
        A("s_and_saveexec_b64 s[68:69], vcc")
        A("s_cbranch_execz L_nopfc")
        A(f"global_load_dwordx4 v[120:123], v2, s[66:67]")
        A(f"global_load_dwordx4 v[124:127], v2, s[66:67] offset:16")
        g.lab("L_nopfc")
        A("s_mov_b64 exec, s[68:69]")
    A("v_lshrrev_b32 v1, 6, v0"); A("v_and_b32 v0, 63, v0"); A("v_readfirstlane_b32 s3, v1")
    A("s_and_b32 s28, s2, 7"); A("s_lshr_b32 s29, s28, 1"); A("s_and_b32 s30, s29, 1")
    A("s_xor_b32 s29, s29, s28"); A("s_and_b32 s29, s29, 1"); A("s_lshr_b32 s28, s28, 2"); A("s_lshl_b32 s28, s28, 1")
    A("s_add_u32 s28, s28, s29"); A("s_lshr_b32 s31, s2, 3")
    if cfg.hmap == 0:
        A("s_and_b32 s29, s31, 7"); A("s_lshl_b32 s29, s29, 2"); A("s_add_u32 s28, s28, s29"); A("s_lshr_b32 s29, s31, 3")
    else:
        A("s_and_b32 s29, s31, 7"); A("s_lshl_b32 s28, s28, 3"); A("s_add_u32 s28, s28, s29"); A("s_lshr_b32 s29, s31, 3")
    if cfg.hmap == 2:
        A("s_and_b32 s28, s2, 7"); A("s_lshl_b32 s28, s28, 2"); A("s_lshr_b32 s29, s2, 3"); A("s_and_b32 s30, s29, 3"); A("s_add_u32 s28, s28, s30")
        A("s_lshr_b32 s30, s2, 5"); A("s_and_b32 s30, s30, 1"); A("s_lshr_b32 s29, s2, 6")
    if cfg.hmap == 3:
        A("s_and_b32 s28, s2, 7"); A("s_lshr_b32 s29, s2, 3"); A("s_and_b32 s30, s29, 3"); A("s_lshl_b32 s30, s30, 3"); A("s_add_u32 s28, s28, s30")
        A("s_lshr_b32 s30, s2, 5"); A("s_and_b32 s30, s30, 1"); A("s_lshr_b32 s29, s2, 6")
    A("s_lshl_b32 s31, s29, 5"); A("s_add_u32 s31, s31, s28")
    A("s_cmp_ge_u32 s3, 4"); A("s_cbranch_scc1 L_tail")
    stream(g, cfg)
    tail(g, cfg)
    g.lab("L_exit"); A("s_endpgm")
    g.lab("L_codeend")
    A("s_endpgm")
    g.L.append('.section .rodata,"a"'); g.L.append(".p2align 6"); g.L.append(f".amdhsa_kernel {KNAME}")
    for t in ["next_free_vgpr 256", "next_free_sgpr 102", "accum_offset 128", "group_segment_fixed_size 0",
              "kernarg_size 96", "user_sgpr_count 2", "user_sgpr_kernarg_segment_ptr 1", "system_sgpr_workgroup_id_x 1"]:
        g.L.append("  .amdhsa_" + t)
    g.L.append(".end_amdhsa_kernel")
    return "\n".join(g.L) + "\n"

def stream(g, cfg):
    A = g.A; D = cfg.D; NS = cfg.ns; F = cfg.F; LA = cfg.LA
    DYN = NS < 16; POOL = (16 - NS) * 8 * 4
    DB = max(D, cfg.boost)
    assert F == LA and DB + 4 <= LA <= 28
    sKS, sVS, sTS = 32, 36, 40
    sCur, sNxt = 44, 48
    sI, sW4, sM1, sM2, sT = 52, 53, 54, 56, 58
    vZ, vKo4, vVo4 = 5, 8, 12
    vQB, vAcc, vO, vA0, vA1, vMask = 16, 32, 48, 52, 56, 60
    vM, vL, vPP, vT = 64, 65, 66, 68
    A(f"v_lshrrev_b32 v{vT}, 2, v0"); A(f"v_and_b32 v{vT}, 3, v{vT}"); A(f"v_lshlrev_b32 v{vKo4}, 8, v{vT}")
    A(f"v_lshrrev_b32 v{vT}, 4, v0"); A(f"v_lshlrev_b32 v{vT}, 6, v{vT}"); A(f"v_add_u32 v{vKo4}, v{vKo4}, v{vT}")
    A(f"v_and_b32 v{vT}, 3, v0"); A(f"v_lshlrev_b32 v{vT}, 4, v{vT}"); A(f"v_add_u32 v{vKo4}, v{vKo4}, v{vT}")
    A(f"v_lshlrev_b32 v{vVo4}, 4, v0")
    A(f"s_lshl_b32 s{sW4}, s30, 2"); A(f"s_add_u32 s{sW4}, s{sW4}, s3")
    gstride = 16384
    def chunk_off(dst, c, tmp):
        A(f"s_lshr_b32 s{dst}, s{c}, 2"); A(f"s_lshl_b32 s{dst}, s{dst}, 16")
        A(f"s_and_b32 s{tmp}, s{c}, 3"); A(f"s_lshl_b32 s{tmp}, s{tmp}, 10"); A(f"s_add_u32 s{dst}, s{dst}, s{tmp}")
    sRot = 79
    if cfg.rotc:
        A(f"s_lshr_b32 s{sRot}, s2, {cfg.rotc_sh}"); A(f"s_mul_i32 s{sRot}, s{sRot}, {cfg.rotc}"); A(f"s_and_b32 s{sRot}, s{sRot}, 15")
        A(f"s_lshl_b32 s{sT+1}, s{sRot}, 3"); A(f"s_add_u32 s{sT+1}, s{sT+1}, s{sW4}")
        chunk_off(sCur, sT+1, sT)
    else:
        chunk_off(sCur, sW4, sT)
    for G_ in range(1, 4): A(f"s_add_u32 s{sCur+G_}, s{sCur}, {gstride*G_}")
    for t_ in range(1, 4):
        A(f"v_add_u32 v{vKo4+t_}, {4096*t_}, v{vKo4}"); A(f"v_add_u32 v{vVo4+t_}, {4096*t_}, v{vVo4}")
    A(f"s_lshl_b32 s{sT}, s31, 21")
    A("s_waitcnt lgkmcnt(0)")
    srd(g, sKS, sK, 0x200000, sT); srd(g, sVS, sV, 0x200000, sT)
    sTK, sVal, sValN, sPool, sRt = 68, 70, 72, 74, 76
    vNeg = 7
    sGEN, sTAG, sCL = 60, 62, 64
    def issue(p, nxt):
        u = p & 15
        srdr = sKS if p < 16 else sVS
        so = (sNxt if nxt else sCur) + (u >> 2)
        vo = (vKo4 if p < 16 else vVo4) + (u & 3)
        A(f"buffer_load_dwordx4 a[{4*p}:{4*p+3}], v{vo}, s[{srdr}:{srdr+3}], s{so} offen {cfg.ldflags}")
    npre = min(F, cfg.pre)
    def fill(p):
        if p >= cfg.D0: A(f"s_waitcnt vmcnt({cfg.D0-1})")
        issue(p, False)
    if cfg.q == 'direct' and cfg.bar0 >= 0: A("s_barrier")
    for p in range(npre):
        fill(p)
        if cfg.touch and p == cfg.touch_at:
            if cfg.stouch: A(f"s_load_dword s78, s[{sVS}:{sVS+1}], 0")
            else: A(f"buffer_load_dword v110, v{vVo4}, s[{sVS}:{sVS+3}], s{sCur} offen {cfg.ldflags}")
    g.stamp('s_iss')
    A(f"s_load_dword s{sGEN}, s[{sWS}:{sWS+1}], {hex(WS_GEN)}")
    if cfg.cand == 6:
        A(f"s_mul_i32 s{sT}, s2, 1525"); A(f"s_lshr_b32 s{sT}, s{sT}, 16"); A(f"s_mul_i32 s{sT}, s{sT}, {NFFN}"); A(f"s_sub_u32 s65, s2, s{sT}")
    else:
        A(f"s_cmp_ge_u32 s2, {NFFN}"); A(f"s_cselect_b32 s{sT}, {NFFN}, 0"); A(f"s_sub_u32 s65, s2, s{sT}")
        A(f"s_cmp_ge_u32 s2, {2*NFFN}"); A(f"s_cselect_b32 s{sT}, {NFFN}, 0"); A(f"s_sub_u32 s65, s65, s{sT}")
    A(f"s_lshl_b32 s{sCL}, s65, 7"); A(f"s_add_u32 s{sCL}, s{sCL}, {WS_CL}")
    srd(g, sTS, sWS, WS_SIZE)
    onehot_masks(g, vMask, vT)
    A(f"v_and_b32 v{vT}, 1, v0"); A(f"v_cmp_eq_u32 s[{sM1}:{sM1+1}], 1, v{vT}")
    A(f"v_and_b32 v{vT}, 2, v0"); A(f"v_cmp_eq_u32 s[{sM2}:{sM2+1}], 2, v{vT}")
    A(f"v_mov_b32 v{vM}, 0xff7fffff"); A(f"v_mov_b32 v{vL}, 0"); A(f"v_mov_b32 v{vZ}, 0")
    for r in range(4): A(f"v_mov_b32 v{vO+r}, 0")
    A(f"v_lshrrev_b32 v{vT}, 4, v0"); A(f"v_lshlrev_b32 v{vT}, 2, v{vT}"); A(f"v_and_b32 v{vT+1}, 3, v0")
    A(f"v_add_u32 v{vT}, v{vT}, v{vT+1}"); A(f"v_lshlrev_b32 v{vT}, 5, v{vT}")
    A(f"v_lshrrev_b32 v{vT+1}, 2, v0"); A(f"v_and_b32 v{vT+1}, 3, v{vT+1}")
    A(f"s_mov_b32 s{sI}, 0")
    sFB, sFK = 77, 80
    if cfg.fb:
        A(f"v_mov_b32 v114, 0"); A(f"ds_write_b32 v{vZ}, v114 offset:{L_MODE}"); A(f"ds_write_b32 v{vZ}, v114 offset:{L_PROG}")
    if DYN:
        A(f"v_mov_b32 v{vNeg}, 0xff7fffff"); A(f"s_mov_b64 s[{sVal}:{sVal+1}], -1"); A(f"s_mov_b64 s[{sValN}:{sValN+1}], -1")
        A(f"s_lshl_b32 s{sPool}, s31, 7"); A(f"s_add_u32 s{sPool}, s{sPool}, {WS_TK}")
    for p in range(npre, F): fill(p)
    A("s_barrier")
    g.stamp('s_bar1')
    q0 = 72
    for w in range(4):
        A(f"ds_read_b128 v[{q0+8*w}:{q0+8*w+3}], v{vT} offset:{L_PART + 512*w}")
        A(f"ds_read_b128 v[{q0+8*w+4}:{q0+8*w+7}], v{vT} offset:{L_PART + 512*w + 16}")
    A("s_waitcnt lgkmcnt(0)")
    for e in range(8):
        A(f"v_add_f32 v{q0+e}, v{q0+e}, v{q0+8+e}"); A(f"v_add_f32 v{q0+16+e}, v{q0+16+e}, v{q0+24+e}")
    for e in range(8): A(f"v_add_f32 v{q0+e}, v{q0+e}, v{q0+16+e}")
    for r in range(4): A(f"v_cvt_pk_bf16_f32 v{q0+8+r}, v{q0+2*r}, v{q0+2*r+1}")
    for t in range(4):
        A(f"v_cmp_eq_u32 vcc, {t}, v{vT+1}"); A("s_nop 1")
        for r in range(4): A(f"v_cndmask_b32 v{vQB+4*t+r}, 0, v{q0+8+r}, vcc")
    g.stamp('s_q')
    A(f"s_add_u32 s{sTAG}, s{sGEN}, {hex(K1)}"); A(f"s_add_u32 s{sTAG+1}, s{sGEN}, {hex(K2)}")
    X = vT
    def qk(n):
        Gi, t = n >> 2, n & 3
        cin = "0" if t == 0 else f"v[{vAcc+4*Gi}:{vAcc+4*Gi+3}]"
        A(f"v_mfma_f32_16x16x32_bf16 v[{vAcc+4*Gi}:{vAcc+4*Gi+3}], a[{4*n}:{4*n+3}], v[{vQB+4*t}:{vQB+4*t+3}], {cin}")
    def buildA(u):
        Gi, t = u >> 2, u & 3
        dst = vA0 if (u & 1) == 0 else vA1
        for r in range(4):
            A(f"v_and_b32_dpp v{dst+r}, v{vPP}, v{vMask+r} row_newbcast:{4*t+Gi} {DPPM}")
    def pv(u):
        n = 16 + u
        src = vA0 if (u & 1) == 0 else vA1
        A(f"v_mfma_f32_16x16x32_bf16 v[{vO}:{vO+3}], v[{src}:{src+3}], a[{4*n}:{4*n+3}], v[{vO}:{vO+3}]")
    def book():
        if not DYN:
            A(f"s_cmp_ge_u32 s{sI}, 15"); A("s_cbranch_scc1 L_final")
            A(f"s_add_u32 s{sT+1}, s{sI}, 1")
            if cfg.rotc: A(f"s_add_u32 s{sT+1}, s{sT+1}, s{sRot}"); A(f"s_and_b32 s{sT+1}, s{sT+1}, 15")
            A(f"s_lshl_b32 s{sT}, s{sT+1}, 3"); A(f"s_add_u32 s{sT}, s{sT}, s{sW4}")
            chunk_off(sNxt, sT, sT+1)
            for G_ in range(1, 4): A(f"s_add_u32 s{sNxt+G_}, s{sNxt}, {gstride*G_}")
        else:
            A(f"s_cmp_ge_u32 s{sI}, {NS-1}"); A("s_cbranch_scc1 L_bdyn")
            A(f"s_add_u32 s{sT+1}, s{sI}, 1"); A(f"s_lshl_b32 s{sT}, s{sT+1}, 3"); A(f"s_add_u32 s{sT}, s{sT}, s{sW4}")
            chunk_off(sNxt, sT, sT+1)
            for G_ in range(1, 4): A(f"s_add_u32 s{sNxt+G_}, s{sNxt}, {gstride*G_}")
            A(f"s_cmp_lg_u32 s{sI}, {NS-2}"); A("s_cbranch_scc1 L_bdone")
            A(f"s_mov_b32 s{sTK}, {cfg.g1}")
            A("s_branch L_breq")
            g.lab("L_bdyn")
            A(f"s_mov_b32 s{sRt}, 0")
            g.lab("L_bwait")
            A("s_waitcnt lgkmcnt(0)")
            A(f"s_cmp_eq_u32 s{sTK+1}, s{sTAG}"); A("s_cbranch_scc1 L_bok")
            A(f"s_cmp_eq_u32 s{sI}, {NS-1}"); A(f"s_cselect_b32 s{sTK}, {cfg.g1}, 1"); A(f"s_mov_b32 s{sTK+1}, 0")
            A(f"s_atomic_add_x2 s[{sTK}:{sTK+1}], s[{sWS}:{sWS+1}], s{sPool} glc")
            A(f"s_add_u32 s{sRt}, s{sRt}, 1"); A(f"s_cmp_lt_u32 s{sRt}, {cfg.spin_max}"); A("s_cbranch_scc1 L_bwait")
            A("s_branch L_final")
            g.lab("L_bok")
            A(f"s_cmp_ge_u32 s{sTK}, {POOL}"); A("s_cbranch_scc1 L_final")
            def goff(dst, u, tmp):
                A(f"s_lshr_b32 s{tmp}, s{u}, 2"); A(f"s_add_u32 s{tmp}, s{tmp}, {8*NS}")
                chunk_off(dst, tmp, tmp+1)
                A(f"s_and_b32 s{tmp}, s{u}, 3"); A(f"s_lshl_b32 s{tmp}, s{tmp}, 14"); A(f"s_add_u32 s{dst}, s{dst}, s{tmp}")
            goff(sNxt, sTK, sT)
            for G_ in range(1, 4): A(f"s_mov_b32 s{sNxt+G_}, 0x400000")
            A(f"s_mov_b32 s{sValN}, 0x11111111")
            if cfg.g1 > 1:
                A(f"s_cmp_lg_u32 s{sI}, {NS-1}"); A("s_cbranch_scc1 L_bone")
                for G_ in range(1, cfg.g1):
                    A(f"s_add_u32 s{sTK}, s{sTK}, 1"); A(f"s_cmp_ge_u32 s{sTK}, {POOL}"); A("s_cbranch_scc1 L_bone")
                    goff(sNxt+G_, sTK, sT)
                    A(f"s_mov_b32 s{sValN}, {hex(int(''.join(['%x' % ((1 << (G_+1)) - 1)]*8), 16))}")
                g.lab("L_bone")
            A(f"s_mov_b32 s{sValN+1}, s{sValN}")
            A(f"s_mov_b32 s{sTK}, 1")
            g.lab("L_breq")
            A(f"s_mov_b32 s{sTK+1}, 0")
            A(f"s_atomic_add_x2 s[{sTK}:{sTK+1}], s[{sWS}:{sWS+1}], s{sPool} glc")
            g.lab("L_bdone")
        if cfg.tailpf:
            A(f"s_cmp_lg_u32 s{sI}, {cfg.tailpf}"); A("s_cbranch_scc1 L_notpf"); A("s_cmp_lg_u32 s3, 0"); A("s_cbranch_scc1 L_notpf")
            A("s_getpc_b64 s[78:79]")
            g.lab("L_pc2")
            A("s_add_u32 s78, s78, L_endcode-L_pc2"); A("s_addc_u32 s79, s79, 0")
            A(f"v_lshlrev_b32 v112, 4, v0")
            for n in range(cfg.tailpf_kb):
                if n: A(f"v_add_u32 v112, 1024, v112")
                A(f"v_min_u32 v113, L_codeend-L_endcode-16, v112")
                A(f"global_load_dwordx4 v[116:119], v113, s[78:79]")
            g.lab("L_notpf")
        if cfg.fb:
            m = sum(1 << c for c in cfg.fb_cks)
            A(f"s_mov_b32 s{sT}, {m}"); A(f"s_bitcmp1_b32 s{sT}, s{sI}"); A("s_cbranch_scc0 L_fbq"); A("s_cmp_lg_u32 s3, 0"); A("s_cbranch_scc1 L_fbq")
            A(f"s_lshl_b32 s{sT}, s{sI}, 1"); A(f"v_mov_b32 v114, s{sT}"); A(f"ds_write_b32 v{vZ}, v114 offset:{L_PROG}")
            g.lab("L_fbq")
        if DB > D and not cfg.fb:
            A(f"s_cmp_ge_u32 s{sI}, {cfg.burst_from}"); A("s_cselect_b64 vcc, -1, 0")
            if cfg.wmask:
                A(f"s_mov_b32 s{sT}, {cfg.wmask}"); A(f"s_bitcmp1_b32 s{sT}, s3"); A("s_cselect_b64 vcc, -1, 0")
            if 'halfboost' in cfg.diag:
                A(f"s_bitcmp1_b32 s2, 3"); A("s_cselect_b64 vcc, -1, vcc")
            if 'qboost' in cfg.diag:
                A(f"s_and_b32 s{sT}, s2, 0x18"); A(f"s_cmp_eq_u32 s{sT}, 0x18"); A("s_cselect_b64 vcc, -1, vcc")
    def soft(part):
        if part == 0:
            A("s_nop 7")
            for d in range(4):
                def acc(Gi, r): return f"v{vAcc+4*Gi+r}"
                A(f"v_cndmask_b32 v{vT+4}, {acc(d,0)}, {acc(1^d,1)}, s[{sM1}:{sM1+1}]")
                A(f"v_cndmask_b32 v{vT+5}, {acc(2^d,2)}, {acc(3^d,3)}, s[{sM1}:{sM1+1}]")
                A(f"v_cndmask_b32 v{X+d}, v{vT+4}, v{vT+5}, s[{sM2}:{sM2+1}]")
            A("s_nop 1")
            A(f"v_add_f32_dpp v{X}, v{X+1}, v{X} quad_perm:[1,0,3,2] {DPPM}")
            A(f"v_add_f32_dpp v{X+2}, v{X+3}, v{X+2} quad_perm:[1,0,3,2] {DPPM}")
            A("s_nop 1")
            A(f"v_add_f32_dpp v{X}, v{X+2}, v{X} quad_perm:[2,3,0,1] {DPPM}")
            A(f"v_cvt_pk_bf16_f32 v{X}, 0, v{X}"); A(f"v_mul_f32 v{X}, {SCALE}, v{X}"); A(f"v_cvt_pk_bf16_f32 v{X}, 0, v{X}")
            if DYN: A(f"v_cndmask_b32 v{X}, v{vNeg}, v{X}, s[{sVal}:{sVal+1}]")
            A(f"v_mov_b32 v{X+1}, v{X}")
        elif part == 1:
            wave_reduce(g, X+1, "v_max_f32")
        elif part == 2:
            A("s_nop 0")
            A(f"v_readlane_b32 s{sT}, v{X+1}, 63"); A("s_nop 1")
            A(f"v_max_f32 v{X+1}, s{sT}, v{vM}")
            A(f"v_sub_f32 v{X+2}, v{vM}, v{X+1}"); A(f"v_sub_f32 v{X}, v{X}, v{X+1}")
            A(f"v_mul_f32 v{X+2}, {LOG2E}, v{X+2}"); A(f"v_mul_f32 v{X}, {LOG2E}, v{X}")
            A(f"v_exp_f32 v{X+2}, v{X+2}"); A(f"v_exp_f32 v{X}, v{X}")
            A(f"v_mov_b32 v{vM}, v{X+1}")
        else:
            A(f"v_fma_f32 v{vL}, v{vL}, v{X+2}, v{X}")
            A(f"v_cvt_pk_bf16_f32 v{vPP}, v{X}, v{X}")
            for r in range(4): A(f"v_mul_f32 v{vO+r}, v{vO+r}, v{X+2}")
            buildA(0)
    def comp(j):
        if j == 0:
            for n in range(5): yield ('qk', n)
        elif j <= 11: yield ('qk', j + 4)
        elif j <= 15: yield ('soft', j - 12)
        else: yield ('pv', j - 16)
    def emit_comp(kind, x):
        if 'nocomp' in cfg.diag: return
        if kind == 'qk': qk(x)
        elif kind == 'soft': soft(x)
        else:
            if x < 15: buildA(x + 1)
            else: A("s_nop 1")
            pv(x)
    class Trk:
        def __init__(t, H, C): t.H = list(H); t.C = C
        def wait_to(t, newC, emit):
            if newC > t.C:
                w = len(t.H) - newC
                if emit: A(f"s_waitcnt vmcnt({w})")
                t.C = newC
    def iteration(trk, emit):
        for j in range(32):
            pos = j + LA
            req = [x for (k, x) in comp(j) if k == 'qk'] + [16 + x for (k, x) in comp(j) if k == 'pv']
            newC = trk.C
            if req:
                idx = max(i for i, o in enumerate(trk.H) if o == ('L', max(req)))
                newC = max(newC, idx + 1)
            newC = max(newC, len(trk.H) - (DB - 1))
            if DB > D and emit:
                wn = D - 1
                if cfg.dpat and cfg.dpat[j % len(cfg.dpat)] != '0': wn = D - 1 + {'-': -1, '+': 1}[cfg.dpat[j % len(cfg.dpat)]]
                if len(trk.H) - wn > newC and not (j == 0):
                    A(f"s_cbranch_vccnz L_bs{j}")
                    A(f"s_waitcnt vmcnt({wn})")
                    g.lab(f"L_bs{j}")
                elif len(trk.H) - wn > newC:
                    pass
            trk.wait_to(newC, emit)
            if emit and cfg.stamps == 'it0' and f'j{j}' in PROFILES['it0']:
                A(f"s_cmp_lg_u32 s{sI}, 0"); A(f"s_cbranch_scc1 L_st0_{j}"); g.stamp(f'j{j}'); g.lab(f"L_st0_{j}")
            if j == 0 and emit:
                book()
                if DB > D and len(trk.H) - (D - 1) > trk.C:
                    A(f"s_cbranch_vccnz L_bs0"); A(f"s_waitcnt vmcnt({D-1})"); g.lab("L_bs0")
            if emit: issue(pos & 31, pos >= 32)
            if emit and cfg.fb:
                if j == cfg.fb_jr:
                    m = sum(1 << (c - 1) for c in cfg.fb_cks)
                    A(f"s_mov_b32 s{sT}, {m}"); A(f"s_bitcmp1_b32 s{sT}, s{sI}"); A("s_cbranch_scc0 L_fbh"); A("s_cmp_lg_u32 s3, 0"); A("s_cbranch_scc1 L_fbh")
                    A(f"s_lshl_b32 s{sT}, s{sI}, 1"); A(f"s_or_b32 s{sT}, s{sT}, 1"); A(f"v_mov_b32 v114, s{sT}"); A(f"ds_write_b32 v{vZ}, v114 offset:{L_PROG}")
                    g.lab("L_fbh")
                if j in cfg.fb_js:
                    mm = 0
                    for c in cfg.fb_cks: mm |= (1 << (c - 1)) if j > cfg.fb_jr else (1 << c)
                    A(f"s_mov_b32 s{sT}, {mm}"); A(f"s_bitcmp1_b32 s{sT}, s{sI}"); A(f"s_cbranch_scc0 L_fbm{j}")
                    A(f"ds_read_b32 v115, v{vZ} offset:{L_MODE}"); A("s_waitcnt lgkmcnt(0)"); A(f"v_readfirstlane_b32 s{sT}, v115")
                    A(f"s_cmp_lg_u32 s{sT}, 0"); A("s_cselect_b64 vcc, -1, 0")
                    g.lab(f"L_fbm{j}")
            trk.H.append(('N', pos - 32) if pos >= 32 else ('L', pos))
            if emit:
                for (k, x) in comp(j): emit_comp(k, x)
        H2 = [(('L', o[1]) if o[0] == 'N' else (('X',) if o[0] == 'L' else o)) for o in trk.H]
        return Trk(H2, trk.C)
    def final_iteration(H0):
        trk = Trk(H0, 0)
        idx = max(i for i, o in enumerate(trk.H) if o == ('L', 4)); trk.C = idx + 1
        for p in range(LA, 32):
            issue(p, False); trk.H.append(('L', p))
        for j in range(32):
            req = [x for (k, x) in comp(j) if k == 'qk'] + [16 + x for (k, x) in comp(j) if k == 'pv']
            if req:
                idx = max(i for i, o in enumerate(trk.H) if o == ('L', max(req)))
                trk.wait_to(idx + 1, True)
            for (k, x) in comp(j): emit_comp(k, x)
    def endit():
        for G_ in range(4): A(f"s_mov_b32 s{sCur+G_}, s{sNxt+G_}")
        if DYN: A(f"s_mov_b64 s[{sVal}:{sVal+1}], s[{sValN}:{sValN+1}]")
        A(f"s_add_u32 s{sI}, s{sI}, 1")
        if 'iters' in cfg.diag:
            A("s_memrealtime s[82:83]"); A("s_waitcnt lgkmcnt(0)")
            A(f"s_lshl_b32 s{sT}, s3, 7"); A(f"s_lshl_b32 s{sT+1}, s{sI}, 2"); A(f"s_add_u32 s{sT}, s{sT}, s{sT+1}")
            A(f"v_mov_b32 v{vT+6}, s{sT}"); A(f"v_mov_b32 v{vT+7}, s82"); A(f"ds_write_b32 v{vT+6}, v{vT+7} offset:15000")
    entry = Trk([('L', p) for p in range(LA)], 0)
    tA = iteration(Trk(entry.H, entry.C), False)
    assert tA.H[-LA:] == entry.H, (tA.H[-LA:], entry.H)
    if DB > D: A("s_mov_b64 vcc, 0")
    g.lab("L_chunk")
    iteration(Trk(entry.H, entry.C), True)
    endit()
    A("s_branch L_chunk")
    g.lab("L_final")
    A("s_cmp_lg_u32 s3, 0"); A("s_cbranch_scc1 L_noclaim")
    if cfg.cand != 6: A("s_cmp_ge_u32 s2, 128"); A("s_cbranch_scc1 L_noclaim")
    if cfg.claim == 's':
        A(f"s_mov_b64 s[66:67], s[{sTAG}:{sTAG+1}]")
        A(f"s_atomic_swap_x2 s[66:67], s[{sWS}:{sWS+1}], s{sCL} glc")
    else:
        A(f"v_mov_b32 v116, s{sTAG}"); A(f"v_mov_b32 v117, s{sTAG+1}")
        A("s_mov_b64 exec, 1")
        A(f"buffer_atomic_swap_x2 v[116:117], v{vZ}, s[{sTS}:{sTS+3}], s{sCL} offen sc0 sc1")
        A("s_mov_b64 exec, -1")
    g.lab("L_noclaim")
    final_iteration([('L', p) for p in range(LA)])
    A(f"s_add_u32 s{sI}, s{sI}, 1")
    g.stamp('s_end')
    A("s_cmp_lg_u32 s3, 0"); A("s_cbranch_scc1 L_norole")
    if cfg.claim == 's':
        A("s_waitcnt lgkmcnt(0)")
    else:
        A("s_waitcnt vmcnt(0)"); A("v_readfirstlane_b32 s66, v116"); A("v_readfirstlane_b32 s67, v117")
    A(f"s_cmp_eq_u64 s[66:67], s[{sTAG}:{sTAG+1}]"); A("s_cselect_b32 s65, 255, s65")
    if cfg.cand != 6:
        A(f"s_sub_u32 s{sT}, s2, {128 - NFFN}"); A("s_cmp_ge_u32 s2, 128"); A(f"s_cselect_b32 s65, s{sT}, s65")
    A(f"v_mov_b32 v{vT}, s65"); A(f"ds_write_b32 v{vZ}, v{vT} offset:{L_ROLE}")
    g.lab("L_norole")
    wave_reduce(g, vL, "v_add_f32")
    t = vT
    A(f"v_and_b32 v{t+4}, 15, v0"); A(f"v_lshlrev_b32 v{t+4}, 5, v{t+4}")
    A(f"v_lshrrev_b32 v{t+5}, 4, v0"); A(f"v_lshlrev_b32 v{t+5}, 4, v{t+5}"); A(f"v_add_u32 v{t+4}, v{t+4}, v{t+5}")
    A(f"s_lshl_b32 s{sT}, s3, 9"); A(f"v_add_u32 v{t+4}, s{sT}, v{t+4}")
    A(f"v_mov_b32 v{t+6}, v{vM}"); A(f"v_mov_b32 v{t+7}, v{vL}")
    A(f"s_lshl_b32 s{sT}, s3, 3"); A(f"v_mov_b32 v{t+5}, s{sT}")
    A("s_mov_b32 exec_hi, 0")
    A(f"ds_write_b128 v{t+4}, v[{vO}:{vO+3}] offset:{L_PART}")
    A("s_mov_b32 exec_lo, 0"); A("s_mov_b32 exec_hi, 0x80000000")
    A(f"ds_write_b64 v{t+5}, v[{t+6}:{t+7}] offset:{L_ML}")
    A("s_mov_b64 exec, -1")
    A("s_waitcnt lgkmcnt(0)")
    A("s_barrier")
    g.stamp('s_bar2')
    if 'iters' in cfg.diag:
        A(f"s_lshl_b32 s{sT}, s3, 7"); A(f"v_lshlrev_b32 v{vT}, 2, v0"); A(f"v_add_u32 v{vT+1}, s{sT}, v{vT}")
        A(f"ds_read_b32 v{vT+2}, v{vT+1} offset:15000"); A("s_waitcnt lgkmcnt(0)")
        A(f"s_lshl_b32 s{sT}, s2, 2"); A(f"s_add_u32 s{sT}, s{sT}, s3"); A(f"s_lshl_b32 s{sT}, s{sT}, 7"); A(f"s_add_u32 s{sT}, s{sT}, {WS_IT}")
        A("s_mov_b32 exec_hi, 0")
        A(f"buffer_store_dword v{vT+2}, v{vT}, s[{sTS}:{sTS+3}], s{sT} offen")
        A("s_mov_b64 exec, -1")
    if 'hs2' in cfg.diag:
        A("s_or_b32 s79, s2, s3"); A("s_cmp_lg_u32 s79, 0"); A("s_cbranch_scc1 L_hs2s")
        hs2_store(g, [(84, 0), (86, 1), (88, 2), (90, 3)], 's')
        g.lab("L_hs2s")
    elif cfg.stamps:
        A(f"s_mov_b32 s75, s{sI}"); A("s_mov_b32 s66, 0")
        dump_stamps(g, 9 if cfg.stamps == 'it0' else 5, False)
    A("s_endpgm")

def tail(g, cfg):
    A = g.A; SC = cfg.SC
    g.lab("L_tail")
    if cfg.tailprio: A(f"s_setprio {cfg.tailprio}")
    A("s_sub_u32 s3, s3, 4")
    sXS, sWQS, sWOS, sWSS, sOS = 32, 36, 40, 44, 52
    sGS, sUS, sDNS = 56, 36, 40
    sODD, sGEN, sR2M = 48, 50, 50
    sT = 68; sJ = 64
    vZ = 9
    A(f"s_lshl_b32 s{sJ}, s29, 1"); A(f"s_add_u32 s{sJ}, s{sJ}, s30")
    A(f"v_mov_b32 v{vZ}, 0")
    def wo_dma(vo):
        A(f"s_lshl_b32 s{sT}, s28, 17")
        srd(g, sWOS, sWO, 128*1024, sT)
        A(f"v_lshrrev_b32 v{vo}, 3, v0"); A(f"v_lshlrev_b32 v{vo}, 10, v{vo}"); A("v_and_b32 v8, 7, v0"); A("v_lshlrev_b32 v8, 4, v8")
        A(f"v_add_u32 v{vo}, v{vo}, v8")
        A(f"s_lshl_b32 s{sT}, s{sJ}, 7"); A(f"s_lshl_b32 s{sT+1}, s3, 15"); A(f"s_add_u32 s{sT}, s{sT}, s{sT+1}")
        A(f"s_lshl_b32 s{sT+2}, s3, 12"); A(f"s_add_u32 s{sT+2}, s{sT+2}, {L_WO}")
        for n in range(4):
            A(f"s_add_u32 m0, s{sT+2}, {n*1024}")
            A(f"s_add_u32 s{sT+3}, s{sT}, {n*8*1024}")
            A(f"buffer_load_dwordx4 v{vo}, s[{sWOS}:{sWOS+3}], s{sT+3} offen {cfg.wflags} lds")
    def wo_prep():
        A(f"s_lshl_b32 s{sT}, s28, 17")
        srd(g, sWOS, sWO, 128*1024, sT)
        A(f"v_lshrrev_b32 v19, 3, v0"); A(f"v_lshlrev_b32 v19, 10, v19"); A("v_and_b32 v8, 7, v0"); A("v_lshlrev_b32 v8, 4, v8")
        A(f"v_add_u32 v19, v19, v8")
        A(f"s_lshl_b32 s58, s{sJ}, 7"); A(f"s_lshl_b32 s59, s3, 15"); A(f"s_add_u32 s58, s58, s59")
        A(f"s_lshl_b32 s59, s3, 12"); A(f"s_add_u32 s59, s59, {L_WO}")
    def wo_issue():
        for n in range(4):
            A(f"s_add_u32 m0, s59, {n*1024}")
            A(f"s_add_u32 s77, s58, {n*8*1024}")
            A(f"buffer_load_dwordx4 v19, s[{sWOS}:{sWOS+3}], s77 offen {cfg.wflags} lds")
    def ptouch():
        A("s_cmp_lg_u32 s3, 0"); A("s_cbranch_scc1 L_ptd")
        for base in ([sOUT, sWG, sWU, sWD, sWOS] if cfg.wo_late else [sOUT, sWG, sWU, sWD]):
            A(f"s_load_dword s67, s[{base}:{base+1}], 0")
        g.lab("L_ptd")
    def wo_tr():
        for T in range(4):
            fr = 96 + 4*T
            A(f"ds_read_b64_tr_b16 a[{fr}:{fr+1}], v13 offset:{T*32*128}")
            A(f"ds_read_b64_tr_b16 a[{fr+2}:{fr+3}], v13 offset:{T*32*128 + 4*128}")
    def mk_tags():
        A(f"s_add_u32 s{sT}, s{sGEN}, {hex(K1)}"); A(f"s_add_u32 s{sT+1}, s{sGEN}, {hex(K2)}")
        A(f"v_mov_b32 v{vTAG}, s{sT}"); A(f"v_mov_b32 v{vTAG+1}, s{sT+1}")

    if cfg.q == 'coop':
        A("v_lshlrev_b32 v2, 4, v0")
        A("v_lshrrev_b32 v3, 2, v0"); A("v_lshlrev_b32 v3, 13, v3"); A("v_and_b32 v8, 3, v0"); A("v_lshlrev_b32 v8, 4, v8")
        A("v_add_u32 v3, v3, v8")
        A("v_lshrrev_b32 v6, 4, v0"); A("v_lshlrev_b32 v6, 10, v6"); A("v_and_b32 v7, 15, v0")
        A("v_lshlrev_b32 v4, 6, v7"); A("v_add_u32 v4, v4, v6")
        A("v_lshlrev_b32 v5, 3, v7"); A("v_add_u32 v5, v5, v6"); A(f"s_lshl_b32 s{sT}, s{sJ}, 7"); A(f"v_add_u32 v5, s{sT}, v5")
        A(f"s_lshl_b32 s70, s{sJ}, 19"); A(f"s_lshl_b32 s71, s28, 8"); A(f"s_add_u32 s70, s70, s71")
        A(f"s_lshl_b32 s71, s3, 6"); A(f"s_add_u32 s70, s70, s71")
        A(f"s_lshl_b32 s72, s3, 12"); A(f"s_add_u32 s72, s72, {L_WQ}")
        A("s_waitcnt lgkmcnt(0)")
        g.stamp('t_args')
        A(f"s_load_dword s{sGEN}, s[{sWS}:{sWS+1}], {hex(WS_GEN)}")
        srd(g, sXS, sX, 4096)
        for m in range(4): A(f"buffer_load_dwordx4 v[{64+4*m}:{64+4*m+3}], v4, s[{sXS}:{sXS+3}], 0 offen offset:{16*m}")
        A(f"buffer_load_dwordx2 v[80:81], v5, s[{sXS}:{sXS+3}], 0 offen")
        srd(g, sWQS, sWQ, 512*8192)
        for n in range(4):
            A(f"s_add_u32 m0, s72, {n*1024}")
            A(f"s_add_u32 s73, s70, {n*16*8192}")
            A(f"buffer_load_dwordx4 v3, s[{sWQS}:{sWQS+3}], s73 offen {cfg.wqflags} lds")
        A("v_mov_b32 v13, s72")
        nlate = 0
        srd(g, sWSS, sWS, WS_SIZE)
        A("v_lshrrev_b32 v11, 4, v0"); A("v_lshlrev_b32 v11, 3, v11"); A("v_lshrrev_b32 v12, 2, v0"); A("v_and_b32 v12, 3, v12")
        A("v_add_u32 v11, v11, v12"); A("v_and_b32 v12, 3, v0"); A("v_lshlrev_b32 v12, 3, v12")
        A("v_lshlrev_b32 v10, 6, v11"); A("v_add_u32 v13, v13, v10"); A("v_add_u32 v13, v13, v12")
        A(f"s_mul_i32 s74, s3, {4*XN_ROW}")
        A("v_lshrrev_b32 v15, 4, v0"); A(f"v_mul_u32_u24 v15, {XN_ROW}, v15"); A("v_lshlrev_b32 v7, 3, v7"); A("v_add_u32 v15, v15, v7")
        A("v_add_u32 v15, s74, v15")
        A("v_and_b32 v14, 3, v0"); A(f"v_mul_u32_u24 v14, {XN_ROW}, v14"); A("v_lshrrev_b32 v7, 4, v0"); A("v_lshlrev_b32 v7, 4, v7")
        A("v_add_u32 v14, v14, v7"); A("v_add_u32 v14, s74, v14")
        A(f"s_waitcnt vmcnt({4 + nlate})")
        g.stamp('t_x')
        for r in range(16):
            A(f"v_lshlrev_b32 v{24+2*r}, 16, v{64+r}"); A(f"v_and_b32 v{25+2*r}, 0xffff0000, v{64+r}")
        A("v_pk_add_f32 v[56:57], v[24:25], v[26:27]"); A("v_pk_add_f32 v[58:59], v[28:29], v[30:31]")
        for r in range(4, 16, 2):
            A(f"v_pk_add_f32 v[56:57], v[56:57], v[{24+2*r}:{25+2*r}]"); A(f"v_pk_add_f32 v[58:59], v[58:59], v[{26+2*r}:{27+2*r}]")
        A("v_pk_add_f32 v[56:57], v[56:57], v[58:59]")
        A("v_add_f32 v56, v56, v57")
        for ctl in ["row_ror:8", "row_ror:4", "row_ror:2", "row_ror:1"]:
            A("s_nop 1"); A(f"v_add_f32_dpp v56, v56, v56 {ctl} {DPPM}")
        A(f"v_mul_f32 v56, {INV512}, v56"); A("v_mov_b32 v57, v56")
        A("v_pk_add_f32 v[60:61], v[24:25], v[56:57] neg_lo:[0,1] neg_hi:[0,1]")
        A("v_pk_mul_f32 v[58:59], v[60:61], v[60:61]")
        for r in range(1, 16):
            A(f"v_pk_add_f32 v[60:61], v[{24+2*r}:{25+2*r}], v[56:57] neg_lo:[0,1] neg_hi:[0,1]")
            A(f"v_pk_fma_f32 v[58:59], v[60:61], v[60:61], v[58:59]")
        A("v_add_f32 v58, v58, v59")
        A("v_cvt_pk_bf16_f32 v56, 0, v56")
        A("v_lshlrev_b32 v24, 16, v80"); A("v_and_b32 v25, 0xffff0000, v80"); A("v_lshlrev_b32 v26, 16, v81"); A("v_and_b32 v27, 0xffff0000, v81")
        fillv = [f"v_sub_f32 v{24+e}, v{24+e}, v56" for e in range(4)] + [f"v_cvt_pk_bf16_f32 v{24+e}, 0, v{24+e}" for e in range(4)]
        for n, ctl in enumerate(["row_ror:8", "row_ror:4", "row_ror:2", "row_ror:1"]):
            A(f"v_add_f32_dpp v58, v58, v58 {ctl} {DPPM}"); A(fillv[2*n]); A(fillv[2*n+1])
        A(f"v_mul_f32 v58, {INV512}, v58"); A("v_cvt_pk_bf16_f32 v58, 0, v58"); A(f"v_add_f32 v58, {EPS}, v58"); A("v_cvt_pk_bf16_f32 v58, 0, v58")
        A("v_sqrt_f32 v58, v58"); A("s_nop 0"); A("v_cvt_pk_bf16_f32 v58, 0, v58"); A("v_rcp_f32 v59, v58"); A("s_nop 0")
        for e in range(4):
            A(f"v_mul_f32 v60, v{24+e}, v59"); A(f"v_fma_f32 v{24+e}, -v60, v58, v{24+e}"); A(f"v_fma_f32 v{24+e}, v{24+e}, v59, v60")
        A("v_cvt_pk_bf16_f32 v24, v24, v25"); A("v_cvt_pk_bf16_f32 v25, v26, v27")
        A(f"ds_write_b64 v15, v[24:25] offset:{L_XN}")
        g.stamp('t_ln')
        A(f"s_waitcnt vmcnt({nlate}) lgkmcnt(0)")
        g.stamp('t_bar0')
        for T in range(2): A(f"ds_read_b128 v[{24+4*T}:{24+4*T+3}], v14 offset:{L_XN + 64*T}")
        for T in range(2):
            for ct in range(2):
                fr = 40 + (T*2+ct)*4
                A(f"ds_read_b64_tr_b16 v[{fr}:{fr+1}], v13 offset:{T*32*64 + ct*32}")
                A(f"ds_read_b64_tr_b16 v[{fr+2}:{fr+3}], v13 offset:{T*32*64 + ct*32 + 4*64}")
        mk_tags()
        for b in range(4):
            A(f"v_mov_b32 v{64+4*b+2}, v{vTAG}"); A(f"v_mov_b32 v{64+4*b+3}, v{vTAG+1}")
        A(f"s_lshl_b32 s70, s28, 15"); A(f"s_lshl_b32 s71, s{sJ}, 10"); A("s_add_u32 s70, s70, s71")
        A(f"s_lshl_b32 s71, s3, 8"); A("s_add_u32 s70, s70, s71"); A(f"s_add_u32 s70, s70, {WS_QP}")
        A("s_waitcnt lgkmcnt(0)")
        for T in range(2):
            for ct in range(2):
                fr = 40 + (T*2+ct)*4
                cin = "0" if T == 0 else f"v[{56+4*ct}:{56+4*ct+3}]"
                A(f"v_mfma_f32_16x16x32_bf16 v[{56+4*ct}:{56+4*ct+3}], v[{24+4*T}:{24+4*T+3}], v[{fr}:{fr+3}], {cin}")
        A(f"s_lshl_b32 s72, s28, 15"); A(f"s_lshl_b32 s73, s29, 13"); A("s_add_u32 s72, s72, s73")
        A(f"s_lshl_b32 s73, s3, 11"); A("s_add_u32 s72, s72, s73"); A(f"s_add_u32 s72, s72, {WS_QP}")
        A("s_nop 4")
        for b in range(4):
            A(f"v_mov_b32 v{64+4*b}, v{56+b}"); A(f"v_mov_b32 v{64+4*b+1}, v{60+b}")
        A("s_mov_b64 exec, 0xffff")
        for b in range(4):
            if b: A("s_add_u32 s70, s70, 8192")
            A(f"buffer_store_dwordx4 v[{64+4*b}:{64+4*b+3}], v2, s[{sWSS}:{sWSS+3}], s70 offen {SC}")
        A("s_mov_b64 exec, -1")
        g.stamp('t_pub')
        A("v_lshrrev_b32 v8, 4, v0"); A("v_lshlrev_b32 v8, 7, v8"); A("v_and_b32 v7, 15, v0"); A("v_lshlrev_b32 v7, 2, v7")
        A("v_add_u32 v8, v8, v7"); A("s_lshl_b32 s73, s3, 9"); A("v_add_u32 v8, s73, v8"); A(f"v_add_u32 v8, {L_PART}, v8")
        if cfg.qwait: A("s_waitcnt vmcnt(0)")
        def q_loads():
            A(f"buffer_load_dwordx4 v[24:27], v2, s[{sWSS}:{sWSS+3}], s72 offen {SC}")
            A(f"buffer_load_dwordx4 v[28:31], v2, s[{sWSS}:{sWSS+3}], s72 offen offset:1024 {SC}")
        poll(g, "qpoll", q_loads, [24, 28], sleep=cfg.qsleep)
        g.stamp('t_got')
        A("v_add_f32 v24, v24, v28"); A("v_add_f32 v25, v25, v29")
        A("ds_write2_b32 v8, v24, v25 offset1:16")
        A("s_waitcnt lgkmcnt(0)")
        A("s_barrier")
        g.stamp('t_bar1')
    else:
        rotS = 78
        if cfg.rot: A(f"s_lshl_b32 s{rotS}, s29, 2")
        else: A(f"s_mov_b32 s{rotS}, 0")
        A(f"v_add_u32 v2, s{rotS}, v0"); A("v_and_b32 v2, 15, v2"); A("v_and_b32 v8, 48, v0"); A("v_add_u32 v2, v2, v8")
        A("v_lshlrev_b32 v2, 4, v2")
        A("v_lshrrev_b32 v3, 4, v0"); A("v_lshlrev_b32 v3, 20, v3"); A("v_and_b32 v8, 15, v0"); A("v_lshlrev_b32 v8, 4, v8")
        A("v_add_u32 v3, v3, v8")
        A(f"s_lshl_b32 s{sT}, s3, 14"); A(f"s_lshl_b32 s{sT+1}, s28, 8"); A(f"s_add_u32 s{sT}, s{sT}, s{sT+1}")
        A(f"s_lshl_b32 s{sT+1}, s29, 10")
        A("s_waitcnt lgkmcnt(0)")
        g.stamp('t_args')
        A(f"s_load_dword s{sGEN}, s[{sWS}:{sWS+1}], {hex(WS_GEN)}")
        srd(g, sXS, sX, 1024, sT+1)
        A(f"buffer_load_dwordx4 v[4:7], v2, s[{sXS}:{sXS+3}], 0 offen")
        srd(g, sWSS, sWS, WS_SIZE)
        srd(g, sWQS, sWQ, 512*8192)
        for n in range(16):
            A(f"s_add_u32 s79, s{rotS}, {n}"); A("s_and_b32 s79, s79, 15"); A("s_lshl_b32 s79, s79, 16"); A(f"s_add_u32 s79, s79, s{sT}")
            for e in range(2):
                idx = 2*n + e
                if cfg.bar0 == idx: A("s_barrier")
                if e == 1: A("s_add_u32 s79, s79, 8192")
                A(f"buffer_load_dwordx4 a[{4*idx}:{4*idx+3}], v3, s[{sWQS}:{sWQS+3}], s79 offen {cfg.wqflags}")
        if cfg.bar0 == 32: A("s_barrier")
        vMask = 16
        onehot_masks(g, vMask, 20)
        A(f"s_waitcnt vmcnt(32)")
        g.stamp('t_x')
        unpack8(g, 4, 24)
        layernorm8(g, 24, 32, sT)
        for w, (a0, a1) in enumerate([(26, 27), (28, 29), (30, 31)]):
            A(f"s_cmp_eq_u32 s3, {w+1}"); A(f"s_cselect_b64 s[72:73], -1, 0")
            A(f"v_cndmask_b32 v24, v24, v{a0}, s[72:73]"); A(f"v_cndmask_b32 v25, v25, v{a1}, s[72:73]")
        A("v_lshrrev_b32 v38, 16, v24"); A("v_or_b32 v36, v24, v38"); A("v_lshrrev_b32 v38, 16, v25"); A("v_or_b32 v37, v25, v38")
        g.stamp('t_ln')
        vA0, vA1, vQ = 44, 48, 40
        def buildAq(idx):
            n, e = idx >> 1, idx & 1
            dst = vA0 if (idx & 1) == 0 else vA1
            for r in range(4): A(f"v_and_b32_dpp v{dst+r}, v{36+e}, v{vMask+r} row_newbcast:{n} {DPPM}")
        A("s_nop 1")
        buildAq(0)
        for idx in range(32):
            if idx < 31: buildAq(idx + 1)
            if idx % 2 == 0 or idx == 31: A(f"s_waitcnt vmcnt({max(0, 30 - idx)})")
            if idx == 31: A("s_nop 1")
            src = vA0 if (idx & 1) == 0 else vA1
            cin = "0" if idx == 0 else f"v[{vQ}:{vQ+3}]"
            A(f"v_mfma_f32_16x16x32_bf16 v[{vQ}:{vQ+3}], v[{src}:{src+3}], a[{4*idx}:{4*idx+3}], {cin}")
        A("v_and_b32 v52, 15, v0"); A("v_lshlrev_b32 v52, 5, v52"); A("v_lshrrev_b32 v53, 4, v0"); A("v_lshlrev_b32 v53, 4, v53")
        A("v_add_u32 v52, v52, v53"); A(f"s_lshl_b32 s{sT}, s3, 9"); A(f"v_add_u32 v52, s{sT}, v52")
        A("s_nop 1")
        A("s_mov_b32 exec_hi, 0")
        A(f"ds_write_b128 v52, v[{vQ}:{vQ+3}] offset:{L_PART}")
        A("s_mov_b64 exec, -1")
        A("s_waitcnt lgkmcnt(0)")
        g.stamp('t_pub')
        A("s_barrier")
        g.stamp('t_bar1')
        mk_tags()

    if cfg.ns < 16:
        A("s_or_b32 s68, s30, s3"); A("s_cmp_lg_u32 s68, 0"); A("s_cbranch_scc1 L_nopool")
        A("s_lshl_b32 s68, s31, 7"); A(f"s_add_u32 s68, s68, {WS_TK}")
        A("v_mov_b32 v24, 0"); A(f"v_mov_b32 v25, v{vTAG}"); A("v_lshlrev_b32 v26, 3, v0")
        A("s_mov_b64 exec, 0xff")
        A(f"buffer_store_dwordx2 v[24:25], v26, s[{sWSS}:{sWSS+3}], s68 offen {SC}")
        A("s_mov_b64 exec, -1")
        g.lab("L_nopool")
    if cfg.wo_late: wo_prep()
    else: wo_dma(3)
    if cfg.ptouch: ptouch()
    sU = 65
    A(f"s_lshl_b32 s{sU}, s28, 2"); A(f"s_add_u32 s{sU}, s{sU}, s29"); A(f"s_lshl_b32 s{sU}, s{sU}, 1"); A(f"s_add_u32 s{sU}, s{sU}, s30")
    srd(g, sXS, sX, 4096); srd(g, sOS, sOUT, 4096)
    A(f"s_cmp_lt_u32 s2, 128"); A("s_cbranch_scc1 L_nox"); A(f"s_cmp_ge_u32 s3, {cfg.nr}"); A("s_cbranch_scc1 L_nox")
    A("v_and_b32 v6, 3, v0"); A("v_lshlrev_b32 v4, 1, v6"); A("s_sub_u32 s73, s2, 128"); A("s_lshl_b32 s73, s73, 3")
    for r in range(4): A(f"buffer_load_ushort v{102+r}, v4, s[{sXS}:{sXS+3}], s73 offen offset:{1024*r}")
    A("s_waitcnt vmcnt(0)")
    for r in range(4): A(f"v_lshlrev_b32 v{102+r}, 16, v{102+r}")
    g.lab("L_nox")
    A("v_lshrrev_b32 v11, 4, v0"); A("v_lshlrev_b32 v11, 3, v11"); A("v_lshrrev_b32 v12, 2, v0"); A("v_and_b32 v12, 3, v12")
    A("v_add_u32 v11, v11, v12"); A("v_and_b32 v12, 3, v0"); A("v_lshlrev_b32 v12, 3, v12")
    A(f"s_lshl_b32 s{sT+2}, s3, 5"); A(f"s_add_u32 s{sT+2}, s{sT+2}, {L_WO}")
    A("v_lshlrev_b32 v13, 7, v11"); A("v_add_u32 v13, v13, v12"); A(f"v_add_u32 v13, s{sT+2}, v13")
    A("s_waitcnt vmcnt(0)")
    A("v_lshlrev_b32 v2, 3, v0")
    A(f"s_lshl_b32 s71, s{sU}, 10"); A(f"s_add_u32 s71, s71, {WS_OP}")
    A("s_lshl_b32 s68, s28, 2"); A("s_add_u32 s68, s68, s3")
    A(f"s_lshl_b32 s73, s68, 11"); A(f"s_add_u32 s73, s73, {WS_OP}")
    A("v_and_b32 v14, 3, v0"); A(f"v_mul_u32_u24 v14, {OA_ROW}, v14"); A("v_lshrrev_b32 v15, 4, v0"); A("v_lshlrev_b32 v15, 4, v15")
    A("v_add_u32 v14, v14, v15")
    A("v_lshlrev_b32 v15, 2, v0"); A(f"s_mul_i32 s69, s3, {OA_ROW}"); A("v_add_u32 v15, s69, v15")
    A("s_lshl_b32 s69, s28, 13"); A(f"s_lshl_b32 s76, s{sJ}, 10"); A("s_add_u32 s69, s69, s76"); A("s_lshl_b32 s76, s3, 8"); A("s_add_u32 s69, s69, s76")
    A("v_lshlrev_b32 v4, 4, v0")
    A(f"s_mov_b32 s{sODD}, 0xaaaaaaaa"); A(f"s_mov_b32 s{sODD+1}, 0xaaaaaaaa")
    A(f"v_mov_b32 v55, v{vTAG}")
    A(f"v_mov_b32 v59, v{vTAG}")
    A(f"s_mov_b32 s{SEL_P}, 0x07060503"); A(f"s_mov_b32 s{SEL_P+1}, 0x07060502"); A(f"s_mov_b32 s{SEL_P+2}, 0x07060501")
    A(f"s_mov_b32 s{SEL_U}, 0x04000c0c"); A(f"s_mov_b32 s{SEL_U+1}, 0x0706000c")
    A("s_waitcnt lgkmcnt(0)")
    g.stamp('t_pf')
    if cfg.fb:
        A("s_cmp_lg_u32 s3, 1"); A("s_cbranch_scc1 L_nomon")
        if 'nomon' in cfg.diag: A("s_branch L_nomon")
        A("s_setprio 0")
        A(f"v_mov_b32 v60, v{vTAG}"); A(f"v_mov_b32 v61, v{vTAG+1}"); A(f"v_mov_b32 v62, v{vTAG}"); A(f"v_mov_b32 v63, v{vTAG+1}")
        A(f"v_readfirstlane_b32 s56, v{vTAG}"); A(f"v_readfirstlane_b32 s57, v{vTAG+1}")
        def wait_prog(val, lab):
            A("s_mov_b32 s75, 0")
            g.lab(lab)
            A(f"ds_read_b32 v65, v{vZ} offset:{L_PROG}"); A("s_waitcnt lgkmcnt(0)"); A("v_readfirstlane_b32 s74, v65")
            A(f"s_cmp_ge_u32 s74, {val}"); A(f"s_cbranch_scc1 {lab}g")
            A(f"s_sleep {cfg.fb_sleep}"); spin_guard(g, 75, lab)
            g.lab(lab + "g")
        for k, c in enumerate(cfg.fb_cks):
            fl = WS_FL + k * 16384
            wait_prog(2*(c-1)+1, f"L_monw{k}")
            A("s_lshr_b32 s79, s2, 3")
            for l in range(8):
                A(f"s_add_u32 s74, s79, {5*l+1+7*k}"); A("s_and_b32 s74, s74, 31"); A("s_lshl_b32 s74, s74, 9")
                A(f"s_add_u32 s74, s74, {fl + l*64}")
                A(f"s_load_dword s{36+l}, s[{sWS}:{sWS+1}], s74")
            A("s_waitcnt lgkmcnt(0)")
            A("s_mov_b32 s74, 0")
            for l in range(8):
                A(f"s_cmp_eq_u32 s{36+l}, s56"); A("s_addc_u32 s74, s74, 0")
            A(f"s_cmp_ge_u32 s74, {cfg.fb_thr}"); A("s_cselect_b32 s74, 1, 0")
            A("v_mov_b32 v65, s74"); A(f"ds_write_b32 v{vZ}, v65 offset:{L_MODE}")
            wait_prog(2*c, f"L_monv{k}")
            A(f"s_lshl_b32 s76, s2, 6"); A(f"s_add_u32 s76, s76, {fl}")
            A("s_mov_b64 exec, 15")
            A(f"buffer_store_dwordx4 v[60:63], v4, s[{sWSS}:{sWSS+3}], s76 offen {SC}")
            A("s_mov_b64 exec, -1")
        A("s_waitcnt vmcnt(0) lgkmcnt(0)")
        if cfg.tailprio: A(f"s_setprio {cfg.tailprio}")
        g.lab("L_nomon")
    A("s_barrier")
    g.lab("L_endcode")
    g.stamp('t_bar2')
    A(f"ds_read_b32 v16, v{vZ} offset:{L_ROLE}")
    if not cfg.wo_late: wo_tr()
    elif cfg.wo_late == 2: wo_issue()
    A("s_cmp_lg_u32 s3, s29"); A("s_cbranch_scc1 L_noop")
    for w in range(4): A(f"ds_read_b64 v[{24+2*w}:{25+2*w}], v2 offset:{L_PART + 512*w}")
    A(f"ds_read_b128 v[40:43], v{vZ} offset:{L_ML}"); A(f"ds_read_b128 v[44:47], v{vZ} offset:{L_ML+16}")
    A("s_waitcnt lgkmcnt(0)")
    A("v_max_f32 v48, v40, v42"); A("v_max3_f32 v48, v48, v44, v46")
    for r, mr in enumerate([40, 42, 44, 46]): A(f"v_sub_f32 v{32+r}, v{mr}, v48")
    for r in range(4): A(f"v_mul_f32 v{32+r}, {LOG2E}, v{32+r}")
    for r in range(4): A(f"v_exp_f32 v{32+r}, v{32+r}")
    A("s_nop 0")
    A("v_mul_f32 v49, v32, v41"); A("v_mul_f32 v52, v32, v24"); A("v_mul_f32 v53, v32, v25")
    for w, lr in [(1, 43), (2, 45), (3, 47)]:
        A(f"v_fmac_f32 v49, v{32+w}, v{lr}"); A(f"v_fmac_f32 v52, v{32+w}, v{24+2*w}"); A(f"v_fmac_f32 v53, v{32+w}, v{25+2*w}")
    A(f"v_cndmask_b32 v54, v48, v49, s[{sODD}:{sODD+1}]")
    A(f"buffer_store_dwordx4 v[52:55], v4, s[{sWSS}:{sWSS+3}], s71 offen {SC}")
    g.lab("L_noop")
    g.stamp('t_op')
    if cfg.wo_late == 1: wo_issue()
    A("s_waitcnt lgkmcnt(0)")
    A("v_readfirstlane_b32 s66, v16")
    A(f"s_cmp_ge_u32 s66, {NFFN}"); A("s_cbranch_scc1 L_nodma")
    srd(g, sGS, sWG, 512*2752); srd(g, sUS, sWU, 512*2752); srd(g, sDNS, sWD, 1376*1024)
    A("v_lshrrev_b32 v3, 2, v0"); A("v_mul_u32_u24 v3, 2752, v3"); A("v_and_b32 v8, 3, v0"); A("v_lshlrev_b32 v8, 4, v8")
    A("v_add_u32 v3, v3, v8")
    A(f"s_mul_i32 s80, s3, {8*16*2752}"); A("s_lshl_b32 s81, s66, 6"); A("s_add_u32 s80, s80, s81")
    A("s_lshl_b32 s81, s3, 13"); A(f"s_add_u32 s82, s81, {L_G}")
    for k in range(8):
        A(f"s_add_u32 m0, s82, {k*1024}"); A(f"s_add_u32 s83, s80, {k*16*2752}")
        A(f"buffer_load_dwordx4 v3, s[{sGS}:{sGS+3}], s83 offen {cfg.wflags} lds")
        A(f"s_add_u32 m0, s82, {k*1024 + 32768}"); A("s_nop 0")
        A(f"buffer_load_dwordx4 v3, s[{sUS}:{sUS+3}], s83 offen {cfg.wflags} lds")
    if not cfg.dnlate: down_dma(g, cfg, sDNS)
    g.lab("L_nodma")
    def o_loads(fl=SC):
        A(f"buffer_load_dwordx4 v[24:27], v4, s[{sWSS}:{sWSS+3}], s73 offen {fl}")
        A(f"buffer_load_dwordx4 v[28:31], v4, s[{sWSS}:{sWSS+3}], s73 offen offset:1024 {fl}")
    if cfg.oloc: poll2(g, "opoll", o_loads, cfg.oloc_fl, cfg.oloc, SC, [24, 28], w32=True)
    else: poll(g, "opoll", o_loads, [24, 28], w32=True, sleep=cfg.osleep)
    g.stamp('t_o')
    A(f"v_mov_b32_dpp v32, v26 quad_perm:[0,0,2,2] {DPPM}"); A(f"v_mov_b32_dpp v33, v26 quad_perm:[1,1,3,3] {DPPM}")
    A(f"v_mov_b32_dpp v34, v30 quad_perm:[0,0,2,2] {DPPM}"); A(f"v_mov_b32_dpp v35, v30 quad_perm:[1,1,3,3] {DPPM}")
    A("v_max_f32 v40, v32, v34"); A("v_sub_f32 v41, v32, v40"); A("v_sub_f32 v42, v34, v40")
    A(f"v_mul_f32 v41, {LOG2E}, v41"); A(f"v_mul_f32 v42, {LOG2E}, v42")
    A("v_exp_f32 v41, v41"); A("v_exp_f32 v42, v42")
    A("s_nop 0")
    A("v_mul_f32 v43, v41, v33"); A("v_fmac_f32 v43, v42, v35"); A("v_rcp_f32 v43, v43"); A("s_nop 0")
    A("v_mul_f32 v41, v41, v43"); A("v_mul_f32 v42, v42, v43")
    A("v_mul_f32 v44, v41, v24"); A("v_mul_f32 v45, v41, v25"); A("v_fmac_f32 v44, v42, v28"); A("v_fmac_f32 v45, v42, v29")
    A("v_cvt_pk_bf16_f32 v44, v44, v45")
    A(f"ds_write_b32 v15, v44 offset:{L_OA}")
    A("s_waitcnt lgkmcnt(0)")
    A("s_barrier")
    if cfg.wo_late: wo_tr()
    for T in range(4): A(f"ds_read_b128 v[{24+4*T}:{24+4*T+3}], v14 offset:{L_OA + 64*T}")
    for T in range(4):
        A(f"s_waitcnt lgkmcnt({3-T})")
        cin = "0" if T == 0 else "v[40:43]"
        A(f"v_mfma_f32_16x16x32_bf16 v[40:43], v[{24+4*T}:{24+4*T+3}], a[{96+4*T}:{96+4*T+3}], {cin}")
    A("s_mov_b64 exec, 0xffff")
    A("s_nop 7")
    pack4(g, 40, 56, SEL_P)
    A(f"buffer_store_dwordx4 v[56:59], v4, s[{sWSS}:{sWSS+3}], s69 offen {SC}")
    A("s_mov_b64 exec, -1")
    g.stamp('t_y')
    tail_rest(g, cfg, sWSS, sXS, sOS, sGS, sUS, sDNS, sR2M, vZ)

def down_dma(g, cfg, sDNS):
    A = g.A
    A("v_lshrrev_b32 v3, 4, v0"); A("v_lshlrev_b32 v3, 10, v3"); A("v_and_b32 v8, 15, v0"); A("v_lshlrev_b32 v8, 4, v8")
    A("v_add_u32 v3, v3, v8")
    A("s_lshl_b32 s80, s66, 15"); A("s_lshl_b32 s81, s3, 8"); A("s_add_u32 s80, s80, s81")
    A("s_lshl_b32 s81, s3, 13"); A(f"s_add_u32 s83, s81, {L_DN}")
    for k in range(8):
        A(f"s_add_u32 m0, s83, {k*1024}"); A(f"s_add_u32 s79, s80, {k*4096}")
        A(f"buffer_load_dwordx4 v3, s[{sDNS}:{sDNS+3}], s79 offen {cfg.wflags} lds")

SEL_P = 61; SEL_U = 82
def sum_units(g, units, dst, tmp):
    A = g.A
    for u in units: unpack4(g, u, tmp, SEL_U)
    for r in range(4): A(f"v_add_f32 v{dst+r}, v{units[0]+r}, v{units[1]+r}")
    for u in units[2:]:
        for r in range(4): A(f"v_add_f32 v{dst+r}, v{dst+r}, v{u+r}")

def unpack_units(g, units, dst, tmp):
    A = g.A
    for n, u in enumerate(units):
        d = dst if n == 0 else tmp
        A(f"v_lshlrev_b32 v{d}, 16, v{u}"); A(f"v_and_b32 v{d+1}, 0xffff0000, v{u}")
        A(f"v_lshlrev_b32 v{d+2}, 16, v{u+1}"); A(f"v_and_b32 v{d+3}, 0xffff0000, v{u+1}")
        if n:
            for r in range(4): A(f"v_add_f32 v{dst+r}, v{dst+r}, v{tmp+r}")

def tail_rest(g, cfg, sWSS, sXS, sOS, sGS, sUS, sDNS, sR2M, vZ):
    A = g.A; SC = cfg.SC
    sTau = 68
    if cfg.cand == 6:
        A("s_cmp_lt_u32 s2, 128"); A("s_cbranch_scc1 L_r1skip"); A("s_cmp_lg_u32 s3, 0"); A("s_cbranch_scc1 L_r1skip")
        A(f"s_sub_u32 s{sTau}, s2, 128")
        A(f"s_mov_b32 s{SEL_U}, 0x04000c0c"); A(f"s_mov_b32 s{SEL_U+1}, 0x0706000c")
    else:
        A(f"s_cmp_lt_u32 s66, {NFFN}"); A("s_cbranch_scc1 L_ffn")
        A(f"s_cmp_ge_u32 s66, {NFFN + 128}"); A("s_cbranch_scc1 L_fin")
        A(f"s_cmp_ge_u32 s3, {cfg.nr}"); A("s_cbranch_scc1 L_fin")
        A(f"s_sub_u32 s{sTau}, s66, {NFFN}")
    A("v_lshrrev_b32 v5, 2, v0"); A("v_and_b32 v6, 3, v0")
    A("v_lshlrev_b32 v2, 13, v5"); A("v_lshlrev_b32 v3, 4, v6"); A("v_add_u32 v2, v2, v3")
    A(f"s_lshl_b32 s71, s{sTau}, 6"); A(f"s_add_u32 s72, s71, {16*8192}")
    A(f"s_lshl_b32 s80, s{sTau}, 6"); A(f"s_add_u32 s80, s80, {WS_HM}")
    A(f"v_mov_b32 v10, v{vTAG}"); A(f"v_mov_b32 v11, v{vTAG+1}")
    def y_loads():
        A(f"buffer_load_dwordx4 v[16:19], v2, s[{sWSS}:{sWSS+3}], s71 offen {SC}")
        A(f"buffer_load_dwordx4 v[20:23], v2, s[{sWSS}:{sWSS+3}], s72 offen {SC}")
    poll(g, "r1poll", y_loads, [16, 20], w32=True, sleep=cfg.rsleep)
    g.stamp('t_poll1')
    sum_units(g, [16, 20], 48, 52)
    reduce_a(g, 48, 52)
    for r in range(4): A(f"v_cvt_pk_bf16_f32 v{48+r}, 0, v{48+r}")
    for r in range(4): A(f"v_add_f32 v{48+r}, v{48+r}, v{102+r}")
    A("v_cvt_pk_bf16_f32 v8, v48, v49"); A("v_cvt_pk_bf16_f32 v9, v50, v51")
    if cfg.nrep == 8: A("s_mov_b32 exec_hi, 0")
    elif cfg.nrep < 8: A(f"s_mov_b64 exec, {hex((1 << (4*cfg.nrep)) - 1)}")
    A(f"buffer_store_dwordx4 v[8:11], v2, s[{sWSS}:{sWSS+3}], s80 offen {SC}")
    if cfg.nrep < 16: A("s_mov_b64 exec, -1")
    g.stamp('t_mid')
    if cfg.cand == 6:
        A("v_lshlrev_b32 v106, 16, v8"); A("v_and_b32 v107, 0xffff0000, v8"); A("v_lshlrev_b32 v108, 16, v9"); A("v_and_b32 v109, 0xffff0000, v9")
        g.lab("L_r1skip")
        A(f"s_cmp_lt_u32 s66, {NFFN}"); A("s_cbranch_scc1 L_ffn")
        g.lab("L_r2")
        A("s_cmp_lt_u32 s2, 128"); A("s_cbranch_scc1 L_fin"); A("s_cmp_lg_u32 s3, 0"); A("s_cbranch_scc1 L_fin")
        A(f"s_sub_u32 s{sTau}, s2, 128")
        A(f"s_mov_b32 s{SEL_U}, 0x04000c0c"); A(f"s_mov_b32 s{SEL_U+1}, 0x0706000c")
        A("v_lshrrev_b32 v5, 2, v0"); A("v_and_b32 v6, 3, v0")
        A("v_lshlrev_b32 v2, 13, v5"); A("v_lshlrev_b32 v3, 4, v6"); A("v_add_u32 v2, v2, v3")
    A(f"v_mov_b32 v7, {32*8192}"); A(f"v_cmp_gt_u32 s[{sR2M}:{sR2M+1}], {NFFN-32}, v5"); A("s_nop 1")
    A(f"v_cndmask_b32 v7, 0, v7, s[{sR2M}:{sR2M+1}]"); A("v_add_u32 v7, v7, v2")
    A(f"s_lshl_b32 s71, s{sTau}, 6"); A(f"s_add_u32 s71, s71, {WS_P2}")
    A(f"s_add_u32 s72, s71, {16*8192}")
    if cfg.cand == 6:
        for r in range(4): A(f"v_mov_b32 v{56+r}, v{106+r}")
    else:
        A("v_lshlrev_b32 v56, 16, v8"); A("v_and_b32 v57, 0xffff0000, v8"); A("v_lshlrev_b32 v58, 16, v9"); A("v_and_b32 v59, 0xffff0000, v9")
    A("v_lshlrev_b32 v4, 1, v6"); A(f"s_lshl_b32 s74, s{sTau}, 3")
    def p_loads():
        A(f"buffer_load_dwordx4 v[16:19], v2, s[{sWSS}:{sWSS+3}], s71 offen {SC}")
        A(f"buffer_load_dwordx4 v[20:23], v2, s[{sWSS}:{sWSS+3}], s72 offen {SC}")
        A(f"buffer_load_dwordx4 v[24:27], v7, s[{sWSS}:{sWSS+3}], s71 offen {SC}")
    if cfg.r2pre: A(f"s_sleep {cfg.r2pre}")
    poll(g, "r2poll", p_loads, [16, 20, 24], w32=True, sleep=cfg.r2sleep)
    for r in range(3): A(f"v_cndmask_b32 v{24+r}, 0, v{24+r}, s[{sR2M}:{sR2M+1}]")
    sum_units(g, [16, 20, 24], 48, 52)
    reduce_a(g, 48, 52)
    for r in range(4): A(f"v_cvt_pk_bf16_f32 v{48+r}, 0, v{48+r}")
    for r in range(4): A(f"v_add_f32 v{48+r}, v{48+r}, v{56+r}")
    for r in range(4): A(f"v_cvt_pk_bf16_f32 v{48+r}, 0, v{48+r}")
    A("s_mov_b64 exec, 15")
    if 'noout' not in cfg.diag:
        for r in range(4): A(f"buffer_store_short_d16_hi v{48+r}, v4, s[{sOS}:{sOS+3}], s74 offen offset:{1024*r} {cfg.outsc}")
    A(f"s_cmp_lg_u32 s{sTau}, 0"); A("s_cbranch_scc1 L_nogen")
    A(f"s_mov_b32 s71, {WS_GEN}"); A("s_mov_b64 exec, 1"); A("v_mov_b32 v4, 0")
    A(f"buffer_store_dword v{vTAG}, v4, s[{sWSS}:{sWSS+3}], s71 offen {SC}")
    g.lab("L_nogen")
    A("s_mov_b64 exec, -1")
    if cfg.cand == 6 and cfg.stamps:
        A(f"s_cmp_lt_u32 s66, {NFFN}"); A("s_cbranch_scc1 L_fin")
        A(f"s_sub_u32 s66, s2, {128 - NFFN}")
    g.stamp('t_end')
    A("s_branch L_fin")

    g.lab("L_ffn")
    if cfg.dnlate: down_dma(g, cfg, sDNS)
    A("v_lshrrev_b32 v11, 4, v0"); A("v_lshlrev_b32 v11, 3, v11"); A("v_lshrrev_b32 v12, 2, v0"); A("v_and_b32 v12, 3, v12")
    A("v_add_u32 v11, v11, v12"); A("v_and_b32 v12, 3, v0"); A("v_lshlrev_b32 v12, 3, v12")
    A("s_lshl_b32 s69, s3, 13"); A(f"s_add_u32 s72, s69, {L_G}"); A(f"s_add_u32 s73, s69, {L_DN}")
    A("v_lshlrev_b32 v16, 6, v11"); A("v_add_u32 v16, v16, v12"); A("v_add_u32 v16, s72, v16")
    A("v_add_u32 v17, 0x8000, v16")
    A("v_lshlrev_b32 v18, 8, v11"); A("v_add_u32 v18, v18, v12"); A("v_add_u32 v18, s73, v18")
    A("v_lshlrev_b32 v2, 5, v0"); A("s_lshl_b32 s68, s3, 11"); A(f"s_and_b32 s69, s66, {cfg.nrep-1}"); A("s_lshl_b32 s69, s69, 13")
    A("s_add_u32 s68, s68, s69"); A(f"s_add_u32 s68, s68, {WS_HM}")
    def h_loads():
        A(f"buffer_load_dwordx4 v[40:43], v2, s[{sWSS}:{sWSS+3}], s68 offen {SC}")
        A(f"buffer_load_dwordx4 v[44:47], v2, s[{sWSS}:{sWSS+3}], s68 offen offset:16 {SC}")
    def dn_frag(n):
        ct, hf = n >> 1, n & 1
        fr = 64 + 4*ct + 2*hf
        A(f"ds_read_b64_tr_b16 a[{fr}:{fr+1}], v18 offset:{ct*32 + hf*4*256}")
    def frags():
        A("v_lshlrev_b32 v3, 4, v0"); A(f"s_mul_i32 s69, s3, {HN_ROW}"); A("v_add_u32 v3, s69, v3")
        A("v_and_b32 v4, 3, v0"); A(f"v_mul_u32_u24 v4, {HN_ROW}, v4"); A("v_lshrrev_b32 v5, 4, v0"); A("v_lshlrev_b32 v5, 4, v5")
        A("v_add_u32 v4, v4, v5"); A("s_lshl_b32 s69, s3, 8"); A("v_add_u32 v4, s69, v4")
        A("v_lshlrev_b32 v6, 2, v0"); A("v_add_u32 v6, s69, v6")
        A("s_mov_b32 s78, 0x07060302"); A("s_mov_b32 s79, 0x05040100")
        for T in range(4):
            for tile in range(4):
                mat, ct = tile >> 1, tile & 1
                base = 16 if mat == 0 else 17
                fr = (T*4 + tile)*4; off = T*32*64 + ct*32
                A(f"ds_read_b64_tr_b16 a[{fr}:{fr+1}], v{base} offset:{off}")
                A(f"ds_read_b64_tr_b16 a[{fr+2}:{fr+3}], v{base} offset:{off + 4*64}")
            A("s_waitcnt lgkmcnt(0)")
        if not cfg.dnlate:
            for n in range(16):
                dn_frag(n)
                if n == 7: A("s_waitcnt lgkmcnt(0)")
    frags()
    def dn_all():
        A("s_waitcnt vmcnt(0)")
        for n in range(16):
            dn_frag(n)
            if n == 7: A("s_waitcnt lgkmcnt(4)")
    poll(g, "hpoll", h_loads, [40, 44], pre=dn_all if cfg.dnlate else None, sleep=cfg.hsleep)
    g.stamp('t_poll1')
    A("v_perm_b32 v36, v44, v40, s79"); A("v_perm_b32 v37, v44, v40, s78"); A("v_perm_b32 v38, v45, v41, s79"); A("v_perm_b32 v39, v45, v41, s78")
    for b in range(4): A(f"ds_write_b32 v6, v{36+b} offset:{L_HN + b*HN_ROW}")
    A("s_waitcnt lgkmcnt(0)"); A("s_barrier")
    A(f"ds_read_b128 v[36:39], v3 offset:{L_HN}")
    A("s_mov_b32 s77, 0x07060302")
    A("s_waitcnt lgkmcnt(0)")
    unpack8(g, 36, 24)
    layernorm8(g, 24, 32, 69)
    for r in range(4): A(f"v_perm_b32 v{36+r}, v{24+2*r+1}, v{24+2*r}, s77")
    A(f"ds_write_b128 v3, v[36:39] offset:{L_HN}")
    A("s_waitcnt lgkmcnt(0)"); A("s_barrier")
    for T in range(4): A(f"ds_read_b128 v[{24+4*T}:{24+4*T+3}], v4 offset:{L_HN + 64*T}")
    acc = 64
    A("v_lshlrev_b32 v2, 4, v0"); A("s_lshl_b32 s68, s3, 10"); A("v_add_u32 v3, s68, v2")
    for T in range(4):
        A(f"s_waitcnt lgkmcnt({3-T})")
        for c in range(4):
            cin = "0" if T == 0 else f"v[{acc+4*c}:{acc+4*c+3}]"
            A(f"v_mfma_f32_16x16x32_bf16 v[{acc+4*c}:{acc+4*c+3}], v[{24+4*T}:{24+4*T+3}], a[{(T*4+c)*4}:{(T*4+c)*4+3}], {cin}")
    A("s_mov_b64 exec, 0xffff")
    A("s_nop 4")
    for c in range(4): A(f"ds_write_b128 v3, v[{acc+4*c}:{acc+4*c+3}] offset:{L_P + c*256}")
    A("s_mov_b64 exec, -1")
    A("s_waitcnt lgkmcnt(0)"); A("s_barrier")
    g.stamp('t_mid')
    for w in range(4): A(f"ds_read_b128 v[{24+4*w}:{24+4*w+3}], v2 offset:{L_P + w*1024}")
    A("v_lshrrev_b32 v4, 5, v0"); A(f"v_mul_u32_u24 v4, {2*ACT_ROW}, v4"); A("v_and_b32 v5, 31, v0"); A("v_lshlrev_b32 v5, 1, v5")
    A("v_add_u32 v4, v4, v5"); A(f"s_mul_i32 s68, s3, {4*ACT_ROW}"); A("v_add_u32 v4, s68, v4")
    A("v_and_b32 v5, 3, v0"); A(f"v_mul_u32_u24 v5, {ACT_ROW}, v5"); A("v_lshrrev_b32 v6, 4, v0"); A("v_lshlrev_b32 v6, 4, v6")
    A("v_add_u32 v5, v5, v6"); A("v_add_u32 v5, s68, v5")
    A("v_mov_b32 v40, 0x3d372713")
    A("s_waitcnt lgkmcnt(0)")
    for r in range(4):
        A(f"v_add_f32 v{24+r}, v{24+r}, v{28+r}"); A(f"v_add_f32 v{32+r}, v{32+r}, v{36+r}")
    for r in range(4): A(f"v_add_f32 v{24+r}, v{24+r}, v{32+r}")
    A("s_nop 1")
    A("v_permlane32_swap_b32 v24, v26"); A("v_permlane32_swap_b32 v25, v27")
    A("s_nop 1")
    for r in range(4): A(f"v_cvt_pk_bf16_f32 v{24+r}, 0, v{24+r}")
    def gelu_steps(gt, up, t):
        return [f"v_mul_f32 v{t}, v{gt}, v{gt}", f"v_mul_f32 v{t}, v{t}, v{gt}", f"v_fma_f32 v{t}, v{t}, v40, v{gt}",
                f"v_mul_f32 v{t}, 0xc0135761, v{t}", f"v_exp_f32 v{t}, v{t}", None, f"v_add_f32 v{t}, 1.0, v{t}",
                f"v_rcp_f32 v{t}, v{t}", None, f"v_mul_f32 v{t}, v{t}, v{gt}", f"v_cvt_pk_bf16_f32 v{t}, 0, v{t}",
                f"v_mul_f32 v{t}, v{t}, v{up}", f"v_cvt_pk_bf16_f32 v{t}, 0, v{t}"]
    for a, b in zip(gelu_steps(24, 26, 28), gelu_steps(25, 27, 32)):
        if a is None: A("s_nop 0")
        else: A(a); A(b)
    A(f"ds_write_b16_d16_hi v4, v28 offset:{L_ACT}"); A(f"ds_write_b16_d16_hi v4, v32 offset:{L_ACT + ACT_ROW}")
    A("s_lshl_b32 s68, s66, 13"); A("s_lshl_b32 s69, s3, 11"); A("s_add_u32 s68, s68, s69"); A(f"s_add_u32 s68, s68, {WS_P2}")
    A("s_waitcnt lgkmcnt(0)")
    A(f"ds_read_b128 v[24:27], v5 offset:{L_ACT}")
    A("s_waitcnt lgkmcnt(0)")
    for c in range(8):
        A(f"v_mfma_f32_16x16x32_bf16 v[{acc+4*c}:{acc+4*c+3}], v[24:27], a[{64+4*c}:{64+4*c+3}], 0")
    A("s_mov_b64 exec, 0xffff"); A("s_nop 3")
    for c in range(8):
        a = acc + 4*c
        pack4(g, a, a, SEL_P)
        A(f"v_mov_b32 v{a+3}, v{vTAG}")
        A(f"buffer_store_dwordx4 v[{a}:{a+3}], v2, s[{sWSS}:{sWSS+3}], s68 offen offset:{256*c} {SC}")
    A("s_mov_b64 exec, -1")
    g.stamp('t_end')
    if cfg.cand == 6: A("s_branch L_r2")
    g.lab("L_fin")
    if 'hs2' in cfg.diag:
        A("s_cmp_lg_u32 s3, 0"); A("s_cbranch_scc1 L_hs2x")
        A("s_cmp_lg_u32 s2, 0"); A("s_cbranch_scc1 L_hs2a")
        A("s_mov_b32 s79, 0"); hs2_store(g, [(90, 4), (94, 5), (66, 15)], 'a')
        g.lab("L_hs2a")
        A("s_cmp_lg_u32 s66, 0"); A("s_cbranch_scc1 L_hs2b")
        A("s_mov_b32 s79, 0"); hs2_store(g, [(96, 12), (98, 13), (100, 14)], 'b')
        g.lab("L_hs2b")
        A(f"s_sub_u32 s78, s66, {NFFN}"); A("s_cmp_ge_u32 s78, 4"); A("s_cbranch_scc1 L_hs2x")
        A("s_lshl_b32 s79, s78, 2"); hs2_store(g, [(100, 8)], 'c')
        A("s_cmp_lg_u32 s78, 0"); A("s_cbranch_scc1 L_hs2x")
        A("s_mov_b32 s79, 0"); hs2_store(g, [(96, 6), (98, 7)], 'd')
        g.lab("L_hs2x")
    elif cfg.stamps: dump_stamps(g, 9, True)
    A("s_endpgm")

if __name__ == "__main__":
    cfg = Cfg()
    import argparse
    ap = argparse.ArgumentParser()
    ap.add_argument("-o", default="k.s")
    ap.add_argument("--D", type=int, default=5); ap.add_argument("--LA", type=int, default=28)
    ap.add_argument("--pre", type=int, default=16); ap.add_argument("--D0", type=int, default=5)
    ap.add_argument("--stamps", default=None); ap.add_argument("--wflags", default="nt"); ap.add_argument("--ldflags", default="nt")
    ap.add_argument("--sc", default="sc0 sc1"); ap.add_argument("--tailprio", type=int, default=3)
    ap.add_argument("--diag", default=""); ap.add_argument("--bar0", type=int, default=24)
    ap.add_argument("--nocodepf", action="store_true"); ap.add_argument("--notouch", action="store_true"); ap.add_argument("--noptouch", action="store_true")
    ap.add_argument("--boost", type=int, default=0); ap.add_argument("--burst_from", type=int, default=14)
    ap.add_argument("--qwait", type=int, default=1)
    ap.add_argument("--dnlate", type=int, default=1)
    ap.add_argument("--touch_at", type=int, default=9)
    ap.add_argument("--hmap", type=int, default=0)
    ap.add_argument("--osleep", type=int, default=0); ap.add_argument("--qsleep", type=int, default=0); ap.add_argument("--rsleep", type=int, default=0)
    ap.add_argument("--ns", type=int, default=16); ap.add_argument("--g1", type=int, default=2)
    ap.add_argument("--tailpf", type=int, default=0); ap.add_argument("--tailpf_kb", type=int, default=6)
    ap.add_argument("--fb", type=int, default=0); ap.add_argument("--fb_thr", type=int, default=5); ap.add_argument("--fb_lo", type=int, default=2); ap.add_argument("--fb_js", default="2,31"); ap.add_argument("--fb_hi", type=int, default=14); ap.add_argument("--fb_step", type=int, default=1); ap.add_argument("--fb_sleep", type=int, default=8)
    ap.add_argument("--fb_np", type=int, default=8); ap.add_argument("--fb_rd", default="s"); ap.add_argument("--fb_wr", default="v")
    ap.add_argument("--fb_half", type=int, default=14); ap.add_argument("--fb_rep", type=int, default=16)
    ap.add_argument("--fb_frd", default="s")
    ap.add_argument("--rotc", type=int, default=0); ap.add_argument("--rotc_sh", type=int, default=3)
    ap.add_argument("--outsc", default="sc0 sc1")
    ap.add_argument("--fb_sc", default="sc0 sc1")
    ap.add_argument("--fb_iw", type=int, default=14); ap.add_argument("--fb_ir", type=int, default=13); ap.add_argument("--fb_jr", type=int, default=26)
    ap.add_argument("--fb_cks", default="12")
    ap.add_argument("--oloc", type=int, default=0); ap.add_argument("--oloc_fl", default="nt")
    ap.add_argument("--claim", default="v")
    ap.add_argument("--stouch", type=int, default=0)
    ap.add_argument("--wmask", type=int, default=0)
    ap.add_argument("--dpat", default="")
    ap.add_argument("--nrep", type=int, default=16)
    ap.add_argument("--wo_late", type=int, default=0)
    ap.add_argument("--cand", type=int, default=3)
    ap.add_argument("--nr", type=int, default=1)
    ap.add_argument("--hsleep", type=int, default=0); ap.add_argument("--r2sleep", type=int, default=0); ap.add_argument("--r2pre", type=int, default=0)
    ap.add_argument("--norot", action="store_true"); ap.add_argument("--wqflags", default="nt"); ap.add_argument("--q", default="coop")
    a = ap.parse_args()
    if 'hs2' in a.diag: a.stamps = 'main'
    cfg.D = a.D; cfg.LA = a.LA; cfg.F = a.LA; cfg.pre = a.pre; cfg.D0 = a.D0; cfg.stamps = a.stamps
    cfg.wflags = a.wflags; cfg.ldflags = a.ldflags; cfg.SC = a.sc; cfg.tailprio = a.tailprio; cfg.diag = a.diag; cfg.bar0 = a.bar0
    cfg.codepf = not a.nocodepf; cfg.touch = not a.notouch; cfg.ptouch = not a.noptouch
    cfg.boost = a.boost if a.boost else max(a.D, a.LA - 4); cfg.burst_from = a.burst_from
    cfg.rot = not a.norot; cfg.wqflags = a.wqflags; cfg.q = a.q; cfg.qwait = a.qwait; cfg.hsleep = a.hsleep; cfg.r2sleep = a.r2sleep; cfg.r2pre = a.r2pre; cfg.nr = a.nr; cfg.cand = a.cand; cfg.wo_late = a.wo_late; cfg.nrep = a.nrep; cfg.dpat = a.dpat; cfg.wmask = a.wmask; cfg.stouch = a.stouch; cfg.claim = a.claim; cfg.oloc = a.oloc; cfg.oloc_fl = a.oloc_fl; cfg.fb_cks = [int(x) for x in a.fb_cks.split(',')]; cfg.fb_iw = a.fb_iw; cfg.fb_ir = a.fb_ir; cfg.fb_jr = a.fb_jr; cfg.fb_sc = a.fb_sc; cfg.outsc = a.outsc; cfg.rotc = a.rotc; cfg.rotc_sh = a.rotc_sh; cfg.fb_frd = a.fb_frd; cfg.fb_half = a.fb_half; cfg.fb_rep = a.fb_rep; cfg.fb_np = a.fb_np; cfg.fb_rd = a.fb_rd; cfg.fb_wr = a.fb_wr; cfg.fb = a.fb; cfg.fb_thr = a.fb_thr; cfg.fb_lo = a.fb_lo; cfg.fb_js = [int(x) for x in a.fb_js.split(',')]; cfg.fb_hi = a.fb_hi; cfg.fb_step = a.fb_step; cfg.fb_sleep = a.fb_sleep; cfg.tailpf = a.tailpf; cfg.tailpf_kb = a.tailpf_kb; cfg.ns = a.ns; cfg.g1 = a.g1; cfg.osleep = a.osleep; cfg.qsleep = a.qsleep; cfg.rsleep = a.rsleep; cfg.hmap = a.hmap; cfg.touch_at = a.touch_at; cfg.dnlate = a.dnlate
    open(a.o, "w").write(gen(cfg))
```
